```python
import torch

def _softmax(x, axis=-1):
    return torch.softmax(x, dim=axis)
def _gelu(x):
    return torch.nn.functional.gelu(x, approximate="tanh")
def _silu(x):
    return torch.nn.functional.silu(x)
def _sigmoid(x):
    return torch.sigmoid(x)
def _layernorm(x, axis=-1, eps=1e-5):
    m = x.mean(dim=axis, keepdim=True)
    v = x.var(dim=axis, keepdim=True, unbiased=False)
    return (x - m) / torch.sqrt(v + eps)
def _scatter_add(tgt, idx, src, axis=0):
    return tgt.clone().index_add_(axis, idx, src)
def _segment_sum(src, seg, n):
    out = torch.zeros((n,) + src.shape[1:], dtype=src.dtype)
    return out.index_add_(0, seg, src)
def _pad(x, pw):
    flat = tuple(v for pair in reversed(pw) for v in pair)
    return torch.nn.functional.pad(x, flat)

kernel_name = 'gated_mix__linear_attn_block__mha_block__prompt'

def setup_inputs():

    _w = (lambda a: (lambda t: t.to(torch.bfloat16) if t.is_floating_point() else t)(torch.as_tensor(a)))
    def _A_setup():
        B, S, D = 1, 2048, 640
        return {
            "x": _w((lambda *s: torch.randn(*s, dtype=torch.bfloat16) * 0.05)(B, S, D)),
            "wqkv": _w((lambda *s: torch.randn(*s, dtype=torch.bfloat16) * 0.8)(D, 3 * D)),
            "wo": _w((lambda *s: torch.randn(*s, dtype=torch.bfloat16) * 0.2)(D, D)),
        }
    _A_in = _A_setup()

    def _B_setup():
        B, S, D, H = 1, 2048, 640, 32
        return {
            "x": _w((lambda *s: torch.randn(*s, dtype=torch.bfloat16) * 0.05)(B, S, D)),
            "wqkv": _w((lambda *s: torch.randn(*s, dtype=torch.bfloat16) * 0.8)(D, 3 * D)),
            "wo": _w((lambda *s: torch.randn(*s, dtype=torch.bfloat16) * 0.05)(D, D)),
        }
    _B_in = _B_setup()

    return {
        "A_x": _A_in["x"],
        "A_wqkv": _A_in["wqkv"],
        "A_wo": _A_in["wo"],
        "B_x": _B_in["x"],
        "B_wqkv": _B_in["wqkv"],
        "B_wo": _B_in["wo"],
        "gate_w": _w((lambda *s: torch.randn(*s, dtype=torch.bfloat16) * 0.05)(640) * 16.0),
    }

def reference(A_x, A_wqkv, A_wo, B_x, B_wqkv, B_wo, gate_w):
    def _A_ref(x, wqkv, wo):
        B, S, D = x.shape
        H = 32; Dh = D // H
        qkv = (lambda x, *d: x.permute(*d))((x @ wqkv).reshape(B, S, 3, H, Dh), 2, 0, 3, 1, 4)
        q, k, v = qkv[0], qkv[1], qkv[2]
        phi = lambda t: torch.where(t > 0, t + 1, torch.exp(t)) + 1e-6
        pq, pk = phi(q), phi(k)
        kv = torch.einsum("bhsd,bhse->bhde", pk, v)
        z = torch.einsum("bhsd->bhd", pk)
        num = torch.einsum("bhqd,bhde->bhqe", pq, kv)
        den = torch.einsum("bhqd,bhd->bhq", pq, z)[..., None] + 1e-6
        o = num / den
        return (lambda x, *d: x.permute(*d))(o, 0, 2, 1, 3).reshape(B, S, D) @ wo

    def _B_ref(x, wqkv, wo):
        B, S, D = x.shape
        H = 32
        Dh = D // H
        qkv = (lambda x, *d: x.permute(*d))((x @ wqkv).reshape(B, S, 3, H, Dh), 2, 0, 3, 1, 4)
        q, k, v = qkv[0], qkv[1], qkv[2]
        scores = torch.einsum("bhqd,bhkd->bhqk", q, k) * (Dh ** -0.5)
        p = _softmax(scores, axis=-1)
        o = torch.einsum("bhqk,bhkd->bhqd", p, v)
        return (lambda x, *d: x.permute(*d))(o, 0, 2, 1, 3).reshape(B, S, D) @ wo

    x = A_x
    g = _sigmoid((x * gate_w).sum(-1, keepdims=True))
    a = _A_ref(x, A_wqkv, A_wo)
    b = _B_ref(x, B_wqkv, B_wo)
    return g * a + (1 - g) * b
```

```python
class Asm:
    def __init__(self):
        self.lines=[]
        self.nlabel=0
    def e(self, s):
        self.lines.append('    '+s)
    def c(self, s):
        self.lines.append('    ; '+s)
    def label(self, name):
        self.lines.append(name+':')
    def newlabel(self, base='L'):
        self.nlabel+=1
        return f'{base}_{self.nlabel}'
    def nop(self, n):
        while n>0:
            k=min(n,16)
            self.e(f's_nop {k-1}')
            n-=k
    def text(self):
        return '\n'.join(self.lines)+'\n'

def v(i,n=1):
    return f'v{i}' if n==1 else f'v[{i}:{i+n-1}]'
def a(i,n=1):
    return f'a{i}' if n==1 else f'a[{i}:{i+n-1}]'
def s(i,n=1):
    return f's{i}' if n==1 else f's[{i}:{i+n-1}]'

def srd(A, dst, base, size):
    A.e(f's_mov_b32 {s(dst)}, {s(base)}')
    A.e(f's_and_b32 {s(dst+1)}, {s(base+1)}, 0xffff')
    A.e(f's_mov_b32 {s(dst+2)}, {size}')
    A.e(f's_mov_b32 {s(dst+3)}, 0x00020000')
```

```python
from asmlib import *
from layout import *
import struct

def f2u(x):
    return struct.unpack('<I', struct.pack('<f', x))[0]

LOG2E=1.4426950408889634

def gen_k1(A, name='k1_kernel'):
    e=A.e
    A.lines.append('.p2align 8')
    A.lines.append(f'.globl {name}')
    A.lines.append(f'.type {name},@function')
    A.label(name)
    e('s_cmp_ge_u32 s2, 256')
    e(f's_cbranch_scc1 {name}_done')
    e('s_load_dwordx4 s[4:7], s[0:1], 0')
    e('s_load_dwordx2 s[8:9], s[0:1], 32')
    e('s_load_dwordx2 s[10:11], s[0:1], 48')
    e('s_load_dwordx2 s[12:13], s[0:1], 72')
    e('s_and_b32 s3, s2, 7')
    e('s_lshr_b32 s19, s2, 3')
    e('s_and_b32 s14, s3, 1')
    e('s_lshl_b32 s14, s14, 3')
    e('s_and_b32 s36, s19, 7')
    e('s_add_u32 s14, s14, s36')
    e('s_lshr_b32 s15, s3, 1')
    e('s_lshl_b32 s15, s15, 2')
    e('s_lshr_b32 s36, s19, 3')
    e('s_add_u32 s15, s15, s36')
    e('s_lshr_b32 s16, s15, 3')
    e('s_and_b32 s17, s15, 7')
    e('v_lshrrev_b32 v2, 6, v0')
    e('v_and_b32 v1, 63, v0')
    e('s_nop 0')
    e('v_readfirstlane_b32 s18, v2')
    e('s_waitcnt lgkmcnt(0)')
    srd(A,20,4,2048*1280)
    e('s_cmp_eq_u32 s16, 0')
    e('s_cselect_b32 s36, s6, s8')
    e('s_cselect_b32 s37, s7, s9')
    srd(A,24,36,640*3840)
    srd(A,28,12,WS_END)
    srd(A,32,10,1280)
    e('v_and_b32 v2, 15, v1')
    e('v_lshrrev_b32 v3, 4, v1')
    e('s_lshl_b32 s36, s14, 7')
    e('s_lshl_b32 s37, s18, 5')
    e('s_add_u32 s36, s36, s37')
    e('v_add_u32 v4, s36, v2')
    e('v_mul_u32_u24 v77, 1280, v4')
    e('v_lshl_add_u32 v77, v3, 4, v77')
    e('v_add_u32 v78, 20480, v77')
    e('s_lshl_b32 s38, s14, 7')
    e('s_lshl_b32 s39, s15, 3')
    e('s_add_u32 s38, s38, s39')
    e('s_lshl_b32 s39, s18, 1')
    e('s_add_u32 s38, s38, s39')
    e('s_mul_i32 s39, s38, 1280')
    e('v_lshlrev_b32 v5, 2, v1')
    for i in range(5):
        e(f'buffer_load_dword v{100+i}, v5, s[32:35], 0 offen offset:{i*256}')
    for rr in range(2):
        for i in range(5):
            e(f'buffer_load_dword v{105+rr*5+i}, v5, s[20:23], s39 offen offset:{rr*1280+i*256}')
    e('s_lshl_b32 s40, s18, 4')
    e('s_mul_i32 s41, s17, 160')
    e('s_mov_b32 s42, 2185')
    e('s_mov_b32 s43, 6554')
    for i in range(8):
        e(f'v_add_u32 v6, {i*64}, v1')
        e('v_mul_lo_u32 v7, v6, s42')
        e('v_lshrrev_b32 v7, 16, v7')
        e('v_mul_u32_u24 v8, 30, v7')
        e('v_sub_u32 v8, v6, v8')
        e('v_mul_lo_u32 v9, v8, s43')
        e('v_lshrrev_b32 v9, 16, v9')
        e('v_mul_u32_u24 v10, 10, v9')
        e('v_sub_u32 v10, v8, v10')
        e('v_add_u32 v7, s40, v7')
        e('v_and_b32 v11, 32, v7')
        e('v_and_b32 v12, 3, v7')
        e('v_add_u32 v11, v11, v12')
        e('v_bfe_u32 v12, v7, 2, 2')
        e('v_lshl_add_u32 v11, v12, 3, v11')
        e('v_bfe_u32 v12, v7, 4, 1')
        e('v_lshl_add_u32 v11, v12, 2, v11')
        e('v_mul_u32_u24 v11, 3840, v11')
        e('v_mul_u32_u24 v12, 1280, v9')
        e('v_add_u32 v11, v11, v12')
        e('v_lshl_add_u32 v11, v10, 4, v11')
        e(f'v_add_u32 v{64+i}, s41, v11')
    e('v_lshrrev_b32 v6, 2, v1')
    e('v_mul_u32_u24 v6, 480, v6')
    e('v_and_b32 v7, 3, v1')
    e('v_mul_u32_u24 v7, 40, v7')
    e('v_add_u32 v72, v6, v7')
    for b in range(1,5):
        e(f'v_add_u32 v{72+b}, {b*30720}, v72')
    e('s_mul_i32 s44, s18, 7680')

    def vmem_group_ops(c):
        ops=[]
        buf=c%5
        for i in range(8):
            o=[]
            if i==0:
                o.append(f's_mov_b32 s45, {c*245760}')
            o.append(f's_add_u32 m0, s44, {buf*30720+i*1024}')
            if i==7:
                o.append('s_mov_b32 exec_hi, 0')
            else:
                o.append('s_nop 0')
            o.append(f'buffer_load_dwordx4 v{64+i}, s[24:27], s45 offen lds')
            if i==7:
                o.append('s_mov_b64 exec, -1')
            ops.append(o)
        for ks2 in range(2):
            ks=c*2+ks2
            for mt in range(2):
                ops.append([f'buffer_load_dwordx4 a[{(ks*2+mt)*4}:{(ks*2+mt)*4+3}], v{77+mt}, s[20:23], 0 offen offset:{ks*64}'])
        return ops

    for c in range(5):
        for o in vmem_group_ops(c):
            for x in o: e(x)

    e('s_cmp_eq_u32 s16, 0')
    e(f's_cbranch_scc0 {name}_B')

    def mainloop(br):
        L=6
        NST=300
        NW={0:48,1:36,2:24,3:24,4:24,5:24,6:24,7:24,8:12,9:0}
        pend=[]
        def reads(n):
            c=n//30; ks2=(n%30)//15; T=n%15
            seg=T//5; t=T%5
            slot=n%8
            for hf in range(2):
                off=(ks2*32+hf*16)*480+seg*160+t*8
                e(f'ds_read_b64_tr_b16 v[{32+slot*4+hf*2}:{32+slot*4+hf*2+1}], v{72+c%5} offset:{off}')
        def barrier(c):
            e(f's_waitcnt vmcnt({NW[c]})')
            e('s_barrier')
            if c>=2 and c+3<=9:
                pend.extend(vmem_group_ops(c+3))
        barrier(0)
        for n in range(L): reads(n)
        for n in range(NST):
            if n+L<NST:
                if (n+L)%30==0:
                    assert not pend
                    barrier((n+L)//30)
                reads(n+L)
                outst=2*L
            else:
                outst=2*(NST-1-n)
            e(f's_waitcnt lgkmcnt({outst})')
            c=n//30; ks2=(n%30)//15; T=n%15
            ks=c*2+ks2
            slot=n%8
            seg=T//5
            wx = (seg==0) or (seg==1 and br==1)
            for mt in range(2):
                acc=128+(T*2+mt)*4
                xa=f'a[{(ks*2+mt)*4}:{(ks*2+mt)*4+3}]'
                wv=f'v[{32+slot*4}:{32+slot*4+3}]'
                cc_='0' if ks==0 else f'v[{acc}:{acc+3}]'
                if wx:
                    e(f'v_mfma_f32_16x16x32_bf16 v[{acc}:{acc+3}], {wv}, {xa}, {cc_}')
                else:
                    e(f'v_mfma_f32_16x16x32_bf16 v[{acc}:{acc+3}], {xa}, {wv}, {cc_}')
            if pend:
                for x in pend.pop(0): e(x)
        assert not pend
        A.nop(10)

    def acc(T,mt,r): return 128+(T*2+mt)*4+r

    def lane_setup():
        e('s_lshl_b32 s36, s17, 2')
        e('v_add_u32 v13, s36, v3')
        e('v_lshlrev_b32 v13, 6, v13')
        e('s_lshl_b32 s36, s14, 2')
        e('s_add_u32 s36, s36, s18')
        e('v_add_u32 v13, s36, v13')

    def rowmax16(reg):
        for sh in (8,4,2,1):
            A.nop(2)
            e(f'v_max_f32_dpp v{reg}, v{reg}, v{reg} row_ror:{sh} row_mask:0xf bank_mask:0xf')

    def phi(regs):
        n=len(regs)
        for i,r in enumerate(regs):
            e(f'v_mul_f32 v{80+i}, s46, v{r}')
        for i,r in enumerate(regs):
            e(f'v_min_f32 v{80+i}, 0, v{80+i}')
        for i,r in enumerate(regs):
            e(f'v_exp_f32 v{80+i}, v{80+i}')
        for i,r in enumerate(regs):
            e(f'v_max_f32 v{r}, 0, v{r}')
        for i,r in enumerate(regs):
            e(f'v_add_f32 v{r}, v{r}, v{80+i}')
        for i,r in enumerate(regs):
            e(f'v_add_f32 v{r}, s47, v{r}')

    def tokmajor_store(seg, mt, base1, base2, kperm, scale, want_norm, do_phi):
        regs=[acc(seg*5+t,mt,r) for t in range(5) for r in range(4)]
        if do_phi: phi(regs)
        if scale:
            for r in regs: e(f'v_mul_f32 v{r}, s48, v{r}')
        if want_norm:
            nr=14+mt
            e(f'v_mul_f32 v{nr}, v{regs[0]}, v{regs[0]}')
            for r in regs[1:]: e(f'v_fmac_f32 v{nr}, v{r}, v{r}')
        pk=44+mt*10
        for i in range(10):
            e(f'v_cvt_pk_bf16_f32 v{pk+i}, v{regs[2*i]}, v{regs[2*i+1]}')
        if kperm:
            e('v_and_b32 v16, 8, v2')
            e('v_lshlrev_b32 v16, 1, v16')
            e('v_and_b32 v17, 7, v2')
            e('v_add_u32 v16, v16, v17')
            if mt: e('v_add_u32 v16, 8, v16')
        else:
            e(f'v_add_u32 v16, {mt*16}, v2')
        e('v_lshlrev_b32 v17, 10, v13')
        e('v_lshl_add_u32 v17, v16, 4, v17')
        e('v_lshlrev_b32 v18, 8, v13')
        e('v_lshl_add_u32 v18, v16, 3, v18')
        e(f's_mov_b32 s49, {base1}')
        e(f's_mov_b32 s50, {base2}')
        e(f'buffer_store_dwordx4 v[{pk}:{pk+3}], v17, s[28:31], s49 offen')
        e(f'buffer_store_dwordx4 v[{pk+4}:{pk+7}], v17, s[28:31], s49 offen offset:512')
        e(f'buffer_store_dwordx2 v[{pk+8}:{pk+9}], v18, s[28:31], s50 offen')
        A.nop(2)

    def norm_store(which):
        e('v_max_f32 v14, v14, v15')
        rowmax16(14)
        e('v_lshlrev_b32 v17, 2, v13')
        e(f's_mov_b32 s49, {NRM+which*32*64*4}')
        e('s_mov_b32 exec_lo, 0x00010001')
        e('s_mov_b32 exec_hi, 0x00010001')
        e('buffer_store_dword v14, v17, s[28:31], s49 offen')
        e('s_mov_b64 exec, -1')
        A.nop(2)

    def consts():
        e(f's_mov_b32 s46, {f2u(LOG2E):#x}')
        e(f's_mov_b32 s47, {f2u(1e-6):#x}')
        e(f's_mov_b32 s48, {f2u(QSCALE):#x}')

    def gate_epilogue():
        e('s_mov_b32 s51, 0xffff0000')
        for rr in range(2):
            d=20+rr
            first=True
            for i in range(5):
                g=100+i; x=105+rr*5+i
                e(f'v_lshlrev_b32 v22, 16, v{g}')
                e(f'v_lshlrev_b32 v23, 16, v{x}')
                if first: e(f'v_mul_f32 v{d}, v22, v23')
                else: e(f'v_fmac_f32 v{d}, v22, v23')
                first=False
                e(f'v_and_b32 v22, s51, v{g}')
                e(f'v_and_b32 v23, s51, v{x}')
                e(f'v_fmac_f32 v{d}, v22, v23')
        for rr in range(2):
            d=20+rr
            for sh in (8,4,2,1):
                A.nop(2)
                e(f'v_add_f32_dpp v{d}, v{d}, v{d} row_ror:{sh} row_mask:0xf bank_mask:0xf')
        A.nop(1)
        for rr in range(2):
            d=20+rr
            for q in range(4):
                e(f'v_readlane_b32 s{52+rr*4+q}, v{d}, {q*16}')
        A.nop(2)
        for rr in range(2):
            d=20+rr
            e(f'v_mov_b32 v{d}, s{52+rr*4}')
            for q in range(1,4):
                e(f'v_add_f32 v{d}, s{52+rr*4+q}, v{d}')
            e(f'v_mul_f32 v{d}, s46, v{d}')
            e(f'v_sub_f32 v{d}, 0, v{d}')
            e(f'v_exp_f32 v{d}, v{d}')
            e('s_nop 0')
            e(f'v_add_f32 v{d}, 1.0, v{d}')
            e(f'v_rcp_f32 v{d}, v{d}')
        e('s_nop 0')
        e('v_cmp_eq_u32 vcc, 1, v1')
        A.nop(2)
        e('v_cndmask_b32 v20, v20, v21, vcc')
        e('v_add_u32 v22, s38, v1')
        e('v_lshlrev_b32 v22, 2, v22')
        e(f's_mov_b32 s49, {GATE}')
        e('s_mov_b64 exec, 3')
        e('buffer_store_dword v20, v22, s[28:31], s49 offen')
        e('s_mov_b64 exec, -1')

    mainloop(0)
    consts()
    gate_epilogue()
    lane_setup()
    for mt in range(2):
        tokmajor_store(0, mt, PA1, PA2, False, False, False, True)
    for t in range(5):
        regs=[acc(5+t,mt,r) for mt in range(2) for r in range(4)]
        phi(regs)
    for t in range(5):
        for isv in range(2):
            T=5+isv*5+t
            dst=80+isv*20+t*4
            for mt in range(2):
                for h in range(2):
                    e(f'v_cvt_pk_bf16_f32 v{dst+mt*2+h}, v{acc(T,mt,2*h)}, v{acc(T,mt,2*h+1)}')
    for i in range(4): e(f'v_mov_b32 v{120+i}, 0x3f803f80')
    A.nop(2)
    for t1 in range(5):
        for t2 in range(5):
            d=128+(t1*6+t2)*4
            e(f'v_mfma_f32_16x16x32_bf16 v[{d}:{d+3}], v[{80+t1*4}:{80+t1*4+3}], v[{100+t2*4}:{100+t2*4+3}], 0')
        d=128+(t1*6+5)*4
        e(f'v_mfma_f32_16x16x32_bf16 v[{d}:{d+3}], v[{80+t1*4}:{80+t1*4+3}], v[120:123], 0')
    e('s_barrier')
    e('s_lshl_b32 s36, s18, 2')
    e('v_add_u32 v16, s36, v3')
    e('v_mul_u32_u24 v16, 1680, v16')
    e('v_and_b32 v17, 3, v1')
    e('v_mul_u32_u24 v17, 80, v17')
    e('v_add_u32 v16, v16, v17')
    A.nop(4)
    e('s_mov_b32 s52, 0x00f0000f')
    e('s_mov_b32 s53, 0xf0000f00')
    e('s_mov_b64 exec, s[52:53]')
    for t1 in range(5):
        for t2 in range(5):
            d=128+(t1*6+t2)*4
            e(f'ds_write_b128 v16, v[{d}:{d+3}] offset:{t2*320+t1*16}')
    e('s_mov_b32 s52, 0x00100001')
    e('s_mov_b32 s53, 0x10000100')
    e('s_mov_b64 exec, s[52:53]')
    for t1 in range(5):
        d=128+(t1*6+5)*4
        e(f'ds_write_b128 v16, v[{d}:{d+3}] offset:{1600+t1*16}')
    e('s_mov_b64 exec, -1')
    e('s_waitcnt lgkmcnt(0)')
    e('s_barrier')
    e('s_lshl_b32 s36, s14, 5')
    e('s_lshl_b32 s37, s17, 2')
    e('s_add_u32 s36, s36, s37')
    e('s_mul_i32 s36, s36, 1680')
    e(f's_add_u32 s49, s36, {KVP}')
    for rnd in range(2):
        e(f'v_add_u32 v16, {rnd*256}, v0')
        e('v_cmp_gt_u32 vcc, 420, v16')
        e('s_and_saveexec_b64 s[52:53], vcc')
        lab=A.newlabel('k1skip')
        e(f's_cbranch_execz {lab}')
        e('v_lshlrev_b32 v16, 4, v16')
        for w in range(4):
            e(f'ds_read_b128 v[{32+w*4}:{32+w*4+3}], v16 offset:{w*6720}')
        e('s_waitcnt lgkmcnt(0)')
        for r in range(4):
            e(f'v_add_f32 v{32+r}, v{32+r}, v{36+r}')
            e(f'v_add_f32 v{40+r}, v{40+r}, v{44+r}')
        for r in range(4):
            e(f'v_add_f32 v{32+r}, v{32+r}, v{40+r}')
        e('buffer_store_dwordx4 v[32:35], v16, s[28:31], s49 offen')
        A.nop(2)
        A.label(lab)
        e('s_mov_b64 exec, s[52:53]')
    e(f's_branch {name}_done')

    A.label(f'{name}_B')
    mainloop(1)
    consts()
    gate_epilogue()
    lane_setup()
    for mt in range(2):
        tokmajor_store(0, mt, QB1, QB2, False, True, True, False)
    norm_store(0)
    for mt in range(2):
        tokmajor_store(1, mt, KB1, KB2, True, False, True, False)
    norm_store(1)
    e('v_lshrrev_b32 v16, 2, v2')
    e('s_lshl_b32 s36, s17, 2')
    e('v_add_u32 v16, s36, v16')
    e('v_lshlrev_b32 v16, 6, v16')
    e('s_lshl_b32 s36, s14, 2')
    e('s_add_u32 s36, s36, s18')
    e('v_add_u32 v16, s36, v16')
    e('v_mul_u32_u24 v16, 1280, v16')
    e('v_mul_u32_u24 v17, 320, v3')
    e('v_add_u32 v16, v16, v17')
    e('v_and_b32 v17, 3, v2')
    e('v_lshl_add_u32 v16, v17, 4, v16')
    e(f's_mov_b32 s49, {VB}')
    for t in range(5):
        T=10+t
        dst=80+t*4
        for mt in range(2):
            for h in range(2):
                e(f'v_cvt_pk_bf16_f32 v{dst+mt*2+h}, v{acc(T,mt,2*h)}, v{acc(T,mt,2*h+1)}')
        e(f'buffer_store_dwordx4 v[{dst}:{dst+3}], v16, s[28:31], s49 offen offset:{t*64}')
    A.label(f'{name}_done')
    e('s_endpgm')

def k1_desc(name='k1_kernel'):
    return f'''.amdhsa_kernel {name}
  .amdhsa_next_free_vgpr 416
  .amdhsa_next_free_sgpr 80
  .amdhsa_accum_offset 256
  .amdhsa_group_segment_fixed_size 0
  .amdhsa_kernarg_size 80
  .amdhsa_user_sgpr_count 2
  .amdhsa_user_sgpr_kernarg_segment_ptr 1
  .amdhsa_system_sgpr_workgroup_id_x 1
.end_amdhsa_kernel
'''
K1_LAUNCH='; @launch kernel=k1_kernel grid=(256,1,1) block=(256,1,1) lds=153600'
```

```python
from asmlib import *
from layout import *
import struct
def f2u(x):
    return struct.unpack('<I', struct.pack('<f', x))[0]

LDS_KVT=0
LDS_MAX=2048
LDS_RED=10240
K2_LDS=LDS_RED+98304
THRESH=40.0

def gen_k2(A, name='k2_kernel'):
    e=A.e
    A.lines.append('.p2align 8')
    A.lines.append(f'.globl {name}')
    A.lines.append(f'.type {name},@function')
    A.label(name)
    e('s_cmp_ge_u32 s2, 256')
    e(f's_cbranch_scc1 {name}_done')
    e('s_load_dwordx2 s[4:5], s[0:1], 72')
    e('s_and_b32 s3, s2, 7')
    e('s_lshr_b32 s6, s2, 3')
    e('s_lshl_b32 s12, s3, 2')
    e('s_lshr_b32 s7, s6, 3')
    e('s_add_u32 s12, s12, s7')
    e('s_and_b32 s13, s6, 7')
    e('v_lshrrev_b32 v2, 6, v0')
    e('v_and_b32 v1, 63, v0')
    e('s_nop 0')
    e('v_readfirstlane_b32 s14, v2')
    e('s_waitcnt lgkmcnt(0)')
    srd(A,8,4,WS_END)
    e('s_and_b32 s15, s14, 1')
    e('s_lshr_b32 s16, s14, 1')
    Q1=lambda qi:16+qi*4
    Q2=lambda qi:32+qi*4
    KF1=lambda b:48+16*b
    KF2=lambda b:52+16*b
    VF1=lambda b:56+16*b
    VF2=lambda b:60+16*b
    SB=lambda b:80+16*b
    PB=lambda b:112+8*b
    OA=lambda qi:128+16*qi
    e('s_mov_b32 s18, 0x000fffff')
    e('s_mov_b32 s19, 0x000fffff')
    e('v_lshrrev_b32 v2, 4, v0')
    e('v_and_b32 v3, 15, v0')
    e('v_mul_u32_u24 v4, 80, v2')
    e('v_lshl_add_u32 v4, v3, 3, v4')
    for i in range(32): e(f'v_mov_b32 v{192+i}, 0')
    e('v_cmp_gt_u32 vcc, 21, v2')
    e('v_cmp_gt_u32 s[20:21], 10, v3')
    e('s_and_b64 s[20:21], s[20:21], vcc')
    e('s_mul_i32 s22, s12, 1680')
    e(f's_add_u32 s22, s22, {KVP}')
    e('s_mov_b64 exec, s[20:21]')
    for p in range(16):
        e(f'buffer_load_dwordx2 v[{192+2*p}:{193+2*p}], v4, s[8:11], s22 offen')
        if p<15: e(f's_add_u32 s22, s22, {32*1680}')
    e('s_mov_b64 exec, -1')
    for qi in range(4):
        for r in range(4): e(f'v_mov_b32 v{Q2(qi)+r}, 0')
    e('v_lshlrev_b32 v5, 4, v1')
    e('v_lshlrev_b32 v6, 3, v1')
    e('v_and_b32 v7, 31, v1')
    e('v_lshrrev_b32 v8, 5, v1')
    e('v_mul_u32_u24 v9, 320, v8')
    e('v_lshl_add_u32 v9, v7, 4, v9')
    e('v_cmp_gt_u32 vcc, 32, v1')
    e('v_mov_b32 v10, 0x3f803f80')
    A.nop(2)
    e('v_cndmask_b32 v11, 0, v10, vcc')
    e('v_cmp_eq_u32 vcc, 20, v7')
    A.nop(2)
    e('v_cndmask_b32 v12, 0, v10, vcc')
    for b in range(2):
        e(f'v_mov_b32 v{KF2(b)}, 0'); e(f'v_mov_b32 v{KF2(b)+1}, 0')
        e(f'v_mov_b32 v{KF2(b)+2}, v11'); e(f'v_mov_b32 v{KF2(b)+3}, 0')
        for r in range(4):
            e(f'v_mov_b32 v{VF1(b)+r}, v12'); e(f'v_mov_b32 v{VF2(b)+r}, v12')
    e('s_lshl_b32 s22, s12, 6')
    e('s_lshl_b32 s23, s13, 3')
    e('s_add_u32 s22, s22, s23')
    e('s_lshl_b32 s23, s15, 2')
    e('s_add_u32 s23, s22, s23')
    e('s_lshl_b32 s24, s23, 10')
    e(f's_add_u32 s24, s24, {QB1}')
    e('s_lshl_b32 s25, s23, 8')
    e(f's_add_u32 s25, s25, {QB2}')
    for qi in range(4):
        e(f'buffer_load_dwordx4 v[{Q1(qi)}:{Q1(qi)+3}], v5, s[8:11], s24 offen offset:{qi*1024}')
    e('s_mov_b32 exec_hi, 0')
    for qi in range(4):
        e(f'buffer_load_dwordx2 v[{Q2(qi)}:{Q2(qi)+1}], v6, s[8:11], s25 offen offset:{qi*256}')
    e('s_mov_b32 exec_hi, -1')
    e('s_lshl_b32 s26, s12, 8')
    e(f's_add_u32 s26, s26, {NRM}')
    e('v_lshlrev_b32 v13, 2, v1')
    e('buffer_load_dword v14, v13, s[8:11], s26 offen')
    e('buffer_load_dword v15, v13, s[8:11], s26 offen offset:0')
    A.lines.pop()
    e(f's_add_u32 s27, s26, {32*64*4}')
    e('buffer_load_dword v15, v13, s[8:11], s27 offen')
    e('s_add_u32 s28, s23, s16')
    e('s_lshl_b32 s29, s28, 10')
    e(f's_add_u32 s29, s29, {PA1}')
    e('buffer_load_dwordx4 v[224:227], v5, s[8:11], s29 offen')
    for r in range(4): e(f'v_mov_b32 v{228+r}, 0')
    e('s_lshl_b32 s29, s28, 8')
    e(f's_add_u32 s29, s29, {PA2}')
    e('s_mov_b32 exec_hi, 0')
    e('buffer_load_dwordx2 v[228:229], v6, s[8:11], s29 offen')
    e('s_mov_b32 exec_hi, -1')
    e('s_lshl_b32 s30, s15, 2')
    e('s_add_u32 s30, s30, s16')
    e('s_lshl_b32 s30, s30, 5')
    e('s_lshl_b32 s31, s13, 8')
    e('s_add_u32 s30, s30, s31')
    e('v_add_u32 v233, s30, v7')
    e('v_lshlrev_b32 v234, 2, v233')
    e(f's_mov_b32 s31, {GATE}')
    e('buffer_load_dword v232, v234, s[8:11], s31 offen')
    e('s_lshl_b32 s32, s12, 6')
    e('s_lshl_b32 s33, s16, 4')
    e('s_add_u32 s32, s32, s33')
    e('s_lshl_b32 s34, s32, 10')
    e(f's_add_u32 s34, s34, {KB1}')
    e('s_lshl_b32 s35, s32, 8')
    e(f's_add_u32 s35, s35, {KB2}')
    e('s_mul_i32 s36, s32, 1280')
    e(f's_add_u32 s36, s36, {VB}')
    e('s_mov_b32 s40, s34'); e('s_mov_b32 s41, s35')
    def loadK(b):
        e(f'buffer_load_dwordx4 v[{KF1(b)}:{KF1(b)+3}], v5, s[8:11], s34 offen')
        e('s_mov_b32 exec_hi, 0')
        e(f'buffer_load_dwordx2 v[{KF2(b)}:{KF2(b)+1}], v6, s[8:11], s35 offen')
        e('s_mov_b32 exec_hi, -1')
        e('s_add_u32 s34, s34, 1024')
        e('s_add_u32 s35, s35, 256')
    def loadV(b):
        e('s_mov_b64 exec, s[18:19]')
        e(f'buffer_load_dwordx4 v[{VF1(b)}:{VF1(b)+3}], v9, s[8:11], s36 offen')
        e(f'buffer_load_dwordx4 v[{VF2(b)}:{VF2(b)+3}], v9, s[8:11], s36 offen offset:640')
        e('s_mov_b64 exec, -1')
        e('s_add_u32 s36, s36, 1280')
    loadK(0)
    loadV(0)
    for i in range(64): e(f'v_mov_b32 v{128+i}, 0')
    e('s_waitcnt vmcnt(0)')
    for p in range(1,16):
        e(f'v_add_f32 v192, v192, v{192+2*p}')
        e(f'v_add_f32 v193, v193, v{193+2*p}')
    e('v_cvt_pk_bf16_f32 v192, v192, v193')
    e('v_lshlrev_b32 v4, 2, v0')
    e(f'ds_write_b32 v4, v192 offset:{LDS_KVT}')
    for r in (14,15):
        for sh in (8,4,2,1):
            A.nop(2)
            e(f'v_max_f32_dpp v{r}, v{r}, v{r} row_ror:{sh} row_mask:0xf bank_mask:0xf')
    A.nop(1)
    for i,r in enumerate((14,15)):
        for q in range(4):
            e(f'v_readlane_b32 s{42+i*4+q}, v{r}, {q*16}')
    A.nop(2)
    e('v_mov_b32 v14, s42')
    for q in range(1,4): e(f'v_max_f32 v14, s{42+q}, v14')
    e('v_mov_b32 v15, s46')
    for q in range(1,4): e(f'v_max_f32 v15, s{46+q}, v15')
    e('v_mul_f32 v14, v14, v15')
    e('v_sqrt_f32 v14, v14')
    e('s_nop 0')
    e(f'v_mul_f32 v14, {f2u(1.02):#x}, v14')
    e('s_nop 0')
    e('v_readfirstlane_b32 s42, v14')
    A.nop(3)
    for qi in range(4): e(f'v_mov_b32 v{236+qi}, v14')
    e(f's_cmp_gt_u32 s42, {f2u(THRESH):#x}')
    e(f's_cbranch_scc0 {name}_main')
    for qi in range(4): e(f'v_mov_b32 v{236+qi}, 0xff800000')
    e('s_mov_b32 s34, s40'); e('s_mov_b32 s35, s41')
    e('s_mov_b32 s43, 0')
    A.label(f'{name}_fb')
    loadK(1)
    e('s_waitcnt vmcnt(0)')
    for qi in range(4):
        e(f'v_mfma_f32_32x32x16_bf16 v[{SB(0)}:{SB(0)+15}], v[{KF1(1)}:{KF1(1)+3}], v[{Q1(qi)}:{Q1(qi)+3}], 0')
        e(f'v_mfma_f32_32x32x16_bf16 v[{SB(0)}:{SB(0)+15}], v[{KF2(1)}:{KF2(1)+3}], v[{Q2(qi)}:{Q2(qi)+3}], v[{SB(0)}:{SB(0)+15}]')
        A.nop(14)
        for i in range(8):
            e(f'v_max3_f32 v{236+qi}, v{SB(0)+2*i}, v{SB(0)+2*i+1}, v{236+qi}')
        A.nop(2)
    e('s_add_u32 s43, s43, 1')
    e('s_cmp_lt_u32 s43, 16')
    e(f's_cbranch_scc1 {name}_fb')
    for qi in range(4):
        e(f'v_mov_b32 v2, v{236+qi}')
        e(f'v_mov_b32 v3, v{236+qi}')
        A.nop(2)
        e('v_permlane32_swap_b32 v2, v3')
        A.nop(2)
        e(f'v_max_f32 v{236+qi}, v2, v3')
    e('s_lshl_b32 s44, s14, 10')
    e('v_lshlrev_b32 v2, 2, v1')
    e('v_add_u32 v3, s44, v2')
    for qi in range(4):
        e(f'ds_write_b32 v3, v{236+qi} offset:{LDS_MAX+qi*256}')
    e('s_waitcnt lgkmcnt(0)')
    e('s_barrier')
    e('s_lshl_b32 s44, s15, 10')
    e('v_add_u32 v3, s44, v2')
    for qi in range(4):
        for kc in range(4):
            e(f'ds_read_b32 v{240+kc}, v3 offset:{LDS_MAX+kc*2048+qi*256}')
        e('s_waitcnt lgkmcnt(0)')
        e(f'v_max3_f32 v{236+qi}, v240, v241, v242')
        e(f'v_max_f32 v{236+qi}, v{236+qi}, v243')
    e('s_mov_b32 s34, s40'); e('s_mov_b32 s35, s41')
    loadK(0)
    e('s_waitcnt vmcnt(0)')
    A.label(f'{name}_main')
    e('s_mov_b32 exec_hi, 0')
    for qi in range(4):
        e(f'v_sub_f32 v2, 0, v{236+qi}')
        e('v_cvt_pk_bf16_f32 v3, v2, v2')
        e('v_lshlrev_b32 v3, 16, v3')
        e('v_sub_f32 v4, v2, v3')
        e(f'v_cvt_pk_bf16_f32 v{Q2(qi)+2}, v2, v4')
    e('s_mov_b32 exec_hi, -1')
    A.nop(2)
    def mf(d,a_,b_,c_):
        cc='0' if c_ is None else f'v[{c_}:{c_+15}]'
        e(f'v_mfma_f32_32x32x16_bf16 v[{d}:{d+15}], v[{a_}:{a_+3}], v[{b_}:{b_+3}], {cc}')
    mf(SB(0),KF1(0),Q1(0),None)
    mf(SB(0),KF2(0),Q2(0),SB(0))
    A.nop(16)
    e('s_mov_b32 s43, 0')
    for r in range(8): e(f'v_mov_b32 v{PB(1)+r}, 0')
    A.nop(2)
    A.label(f'{name}_loop')
    def grp(sb,pb,g):
        for i in range(4): e(f'v_exp_f32 v{sb+4*g+i}, v{sb+4*g+i}')
    def cv(sb,pb,g):
        e(f'v_cvt_pk_bf16_f32 v{pb+2*g}, v{sb+4*g}, v{sb+4*g+1}')
        e(f'v_cvt_pk_bf16_f32 v{pb+2*g+1}, v{sb+4*g+2}, v{sb+4*g+3}')
    for tb in range(2):
        for qi in range(4):
            n=tb*4+qi
            cur=SB(n%2); nx=SB((n+1)%2); P=PB(n%2); Pp=PB((n+1)%2)
            nb = tb if qi<3 else 1-tb
            nq=(qi+1)%4
            pq=(qi-1)%4; pbuf= tb if qi>0 else 1-tb
            if qi==3: e('s_waitcnt vmcnt(2)')
            mf(nx,KF1(nb),Q1(nq),None)
            if qi==0: loadK(1-tb)
            grp(cur,P,0)
            mf(OA(pq),VF2(pbuf),Pp+4,OA(pq))
            cv(cur,P,0)
            mf(nx,KF2(nb),Q2(nq),nx)
            grp(cur,P,1); cv(cur,P,1)
            if qi==1: loadV(1-tb)
            grp(cur,P,2); cv(cur,P,2)
            if qi==0: e('s_waitcnt vmcnt(2)')
            mf(OA(qi),VF1(tb),P,OA(qi))
            grp(cur,P,3); cv(cur,P,3)
    e('s_add_u32 s43, s43, 1')
    e('s_cmp_lt_u32 s43, 8')
    e(f's_cbranch_scc1 {name}_loop')
    A.nop(2)
    mf(OA(3),VF2(1),PB(1)+4,OA(3))
    A.nop(16)
    e('s_waitcnt vmcnt(0)')
    for qi in range(4):
        e('s_lshl_b32 s44, s15, 2')
        e('s_add_u32 s44, s44, s16')
        e(f's_add_u32 s44, s44, {qi*8}')
        e('s_mul_i32 s44, s44, 3072')
        e(f's_add_u32 s44, s44, {LDS_RED}')
        e('v_add_u32 v2, s44, v5')
        for q in range(3):
            e(f'ds_write_b128 v2, v[{OA(qi)+4*q}:{OA(qi)+4*q+3}] offset:{q*1024}')
    e('s_waitcnt lgkmcnt(0)')
    e('s_barrier')
    e('s_mul_i32 s44, s14, 12288')
    e(f's_add_u32 s44, s44, {LDS_RED}')
    e('v_add_u32 v2, s44, v5')
    for src in range(4):
        for q in range(3):
            e(f'ds_read_b128 v[{128+src*12+q*4}:{128+src*12+q*4+3}], v2 offset:{src*3072+q*1024}')
    e('v_lshlrev_b32 v3, 6, v7')
    e('v_lshl_add_u32 v3, v8, 4, v3')
    e(f'ds_read_b128 v[48:51], v3 offset:{LDS_KVT}')
    e(f'ds_read_b128 v[52:55], v3 offset:{LDS_KVT+32}')
    e('s_waitcnt lgkmcnt(0)')
    mf(80,48,224,None)
    mf(80,52,228,80)
    for r in range(12):
        e(f'v_add_f32 v{128+r}, v{128+r}, v{140+r}')
        e(f'v_add_f32 v{152+r}, v{152+r}, v{164+r}')
    for r in range(12):
        e(f'v_add_f32 v{128+r}, v{128+r}, v{152+r}')
    e('s_mul_i32 s44, s12, 40')
    e('v_mul_u32_u24 v4, 2560, v233')
    e('v_lshl_add_u32 v4, v8, 3, v4')
    e('v_add_u32 v4, s44, v4')
    e(f's_mov_b32 s45, {OP}')
    e(f's_mov_b32 s46, {OP+1280}')
    def finish(base, isA):
        e(f'v_mov_b32 v2, v{base+8}')
        e(f'v_mov_b32 v3, v{base+8}')
        A.nop(2)
        e('v_permlane32_swap_b32 v2, v3')
        A.nop(2)
        if isA:
            e(f'v_add_f32 v3, {f2u(1e-6):#x}, v3')
        e('v_rcp_f32 v3, v3')
        if isA:
            e('v_mov_b32 v2, v232')
        else:
            e('v_sub_f32 v2, 1.0, v232')
        e('v_mul_f32 v3, v3, v2')
        for r in range(12): e(f'v_mul_f32 v{base+r}, v{base+r}, v3')
        for i in range(6): e(f'v_cvt_pk_bf16_f32 v{200+i}, v{base+2*i}, v{base+2*i+1}')
        so='s45' if isA else 's46'
        e(f'buffer_store_dwordx2 v[200:201], v4, s[8:11], {so} offen')
        e(f'buffer_store_dwordx2 v[202:203], v4, s[8:11], {so} offen offset:16')
        e('s_mov_b32 exec_hi, 0')
        e(f'buffer_store_dwordx2 v[204:205], v4, s[8:11], {so} offen offset:32')
        e('s_mov_b32 exec_hi, -1')
        A.nop(2)
    finish(128,False)
    A.nop(4)
    finish(80,True)
    A.label(f'{name}_done')
    e('s_endpgm')

def k2_desc(name='k2_kernel'):
    return f'''.amdhsa_kernel {name}
  .amdhsa_next_free_vgpr 256
  .amdhsa_next_free_sgpr 80
  .amdhsa_accum_offset 256
  .amdhsa_group_segment_fixed_size 0
  .amdhsa_kernarg_size 80
  .amdhsa_user_sgpr_count 2
  .amdhsa_user_sgpr_kernarg_segment_ptr 1
  .amdhsa_system_sgpr_workgroup_id_x 1
.end_amdhsa_kernel
'''
K2_LAUNCH=f'; @launch kernel=k2_kernel grid=(256,1,1) block=(512,1,1) lds={K2_LDS}'
```

```python
from asmlib import *
from layout import *

def gen_k3(A, name='k3_kernel'):
    e=A.e
    A.lines.append('.p2align 8')
    A.lines.append(f'.globl {name}')
    A.lines.append(f'.type {name},@function')
    A.label(name)
    e('s_cmp_ge_u32 s2, 256')
    e(f's_cbranch_scc1 {name}_done')
    e('s_load_dwordx2 s[4:5], s[0:1], 16')
    e('s_load_dwordx2 s[6:7], s[0:1], 40')
    e('s_load_dwordx4 s[8:11], s[0:1], 56')
    e('s_load_dwordx2 s[12:13], s[0:1], 72')
    e('s_and_b32 s3, s2, 7')
    e('s_lshr_b32 s14, s2, 3')
    e('s_lshl_b32 s15, s3, 2')
    e('s_lshr_b32 s16, s14, 3')
    e('s_add_u32 s15, s15, s16')
    e('s_and_b32 s16, s14, 7')
    e('v_lshrrev_b32 v2, 6, v0')
    e('v_and_b32 v1, 63, v0')
    e('s_nop 0')
    e('v_readfirstlane_b32 s17, v2')
    e('s_waitcnt lgkmcnt(0)')
    e('s_cmp_lt_u32 s17, 2')
    e('s_cselect_b32 s18, s4, s6')
    e('s_cselect_b32 s19, s5, s7')
    srd(A,20,18,640*1280)
    srd(A,24,12,WS_END)
    srd(A,28,8,2048*1280)
    e('v_and_b32 v2, 15, v1')
    e('v_lshrrev_b32 v3, 4, v1')
    e('s_lshl_b32 s32, s15, 6')
    e('v_add_u32 v4, s32, v2')
    e('v_mul_u32_u24 v4, 2560, v4')
    e('v_lshl_add_u32 v4, v3, 4, v4')
    e('s_mul_i32 s33, s17, 640')
    e(f's_add_u32 s33, s33, {OP}')
    for mt in range(4):
        e(f's_add_u32 s{36+mt}, s33, {mt*40960}')
    e('s_and_b32 s34, s17, 1')
    e('s_mul_i32 s34, s34, 320*1280')
    e('s_mul_i32 s35, s16, 160')
    e('s_add_u32 s34, s34, s35')
    e('s_mov_b32 s43, 6554')
    for i in range(5):
        e(f'v_add_u32 v6, {i*64}, v1')
        e('v_mul_lo_u32 v7, v6, s43')
        e('v_lshrrev_b32 v7, 16, v7')
        e('v_mul_u32_u24 v13, 10, v7')
        e('v_sub_u32 v13, v6, v13')
        e('v_and_b32 v14, 3, v7')
        e('v_bfe_u32 v15, v7, 2, 2')
        e('v_lshl_add_u32 v14, v15, 3, v14')
        e('v_bfe_u32 v15, v7, 4, 1')
        e('v_lshl_add_u32 v14, v15, 2, v14')
        e('v_mul_u32_u24 v14, 1280, v14')
        e('v_lshl_add_u32 v14, v13, 4, v14')
        e(f'v_add_u32 v{8+i}, s34, v14')
    e('s_mul_i32 s44, s17, 40960')
    e('v_lshrrev_b32 v6, 2, v1')
    e('v_mul_u32_u24 v6, 160, v6')
    e('v_and_b32 v7, 3, v1')
    e('v_lshl_add_u32 v6, v7, 3, v6')
    e('v_add_u32 v5, s44, v6')
    def group(ks):
        slot=ks%8
        e(f's_mov_b32 s45, {ks*40960}')
        for i in range(5):
            e(f's_add_u32 m0, s44, {slot*5120+i*1024}')
            e('s_nop 0')
            e(f'buffer_load_dwordx4 v{8+i}, s[20:23], s45 offen lds')
        for mt in range(4):
            r=(ks*4+mt)*4
            e(f'buffer_load_dwordx4 a[{r}:{r+3}], v4, s[24:27], s{36+mt} offen offset:{ks*64}')
    for ks in range(8): group(ks)
    NW=[63,63,63,54,45,36,27,18,9,0]
    def reads(ks):
        slot=ks%8; wb=32+(ks%2)*20
        for t in range(5):
            for hf in range(2):
                e(f'ds_read_b64_tr_b16 v[{wb+t*4+hf*2}:{wb+t*4+hf*2+1}], v5 offset:{slot*5120+hf*2560+t*32}')
    e(f's_waitcnt vmcnt({NW[0]})')
    reads(0)
    for ks in range(10):
        if ks<9:
            e(f's_waitcnt vmcnt({NW[ks+1]})')
            reads(ks+1)
            e('s_waitcnt lgkmcnt(10)')
        else:
            e('s_waitcnt lgkmcnt(0)')
        wb=32+(ks%2)*20
        for t in range(5):
            for mt in range(4):
                acc=128+(mt*5+t)*4
                r=(ks*4+mt)*4
                cc='0' if ks==0 else f'v[{acc}:{acc+3}]'
                e(f'v_mfma_f32_16x16x32_bf16 v[{acc}:{acc+3}], v[{wb+t*4}:{wb+t*4+3}], a[{r}:{r+3}], {cc}')
        if ks<2: group(ks+8)
    A.nop(10)
    e('s_barrier')
    e('v_lshlrev_b32 v6, 4, v1')
    e('s_mul_i32 s45, s17, 5120')
    e('v_add_u32 v7, s45, v6')
    e('v_add_u32 v13, 40960, v7')
    for mt in range(4):
        for t in range(5):
            acc=128+(mt*5+t)*4
            off=(mt&1)*20480+t*1024
            e(f'ds_write_b128 v{7 if mt<2 else 13}, v[{acc}:{acc+3}] offset:{off}')
    e('s_waitcnt lgkmcnt(0)')
    e('s_barrier')
    e('s_mul_i32 s45, s17, 20480')
    e('v_add_u32 v7, s45, v6')
    for src in range(4):
        for t in range(5):
            d=32+(src*5+t)*4
            e(f'ds_read_b128 v[{d}:{d+3}], v7 offset:{src*5120+t*1024}')
    e('s_waitcnt lgkmcnt(0)')
    for i in range(20):
        e(f'v_add_f32 v{32+i}, v{32+i}, v{52+i}')
        e(f'v_add_f32 v{72+i}, v{72+i}, v{92+i}')
    for i in range(20):
        e(f'v_add_f32 v{32+i}, v{32+i}, v{72+i}')
    for i in range(10):
        e(f'v_cvt_pk_bf16_f32 v{112+i}, v{32+2*i}, v{33+2*i}')
    e('s_lshl_b32 s32, s15, 6')
    e('s_lshl_b32 s33, s17, 4')
    e('s_add_u32 s32, s32, s33')
    e('v_add_u32 v4, s32, v2')
    e('v_mul_u32_u24 v4, 1280, v4')
    e('v_lshl_add_u32 v4, v3, 3, v4')
    e('v_add_u32 v4, s35, v4')
    for t in range(5):
        e(f'buffer_store_dwordx2 v[{112+2*t}:{113+2*t}], v4, s[28:31], 0 offen offset:{t*32}')
    A.label(f'{name}_done')
    e('s_endpgm')

def k3_desc(name='k3_kernel'):
    return f'''.amdhsa_kernel {name}
  .amdhsa_next_free_vgpr 416
  .amdhsa_next_free_sgpr 80
  .amdhsa_accum_offset 256
  .amdhsa_group_segment_fixed_size 0
  .amdhsa_kernarg_size 80
  .amdhsa_user_sgpr_count 2
  .amdhsa_user_sgpr_kernarg_segment_ptr 1
  .amdhsa_system_sgpr_workgroup_id_x 1
.end_amdhsa_kernel
'''
K3_LAUNCH='; @launch kernel=k3_kernel grid=(256,1,1) block=(256,1,1) lds=163840'
```

```python
S=2048; D=640; H=32; DH=20
QB1=0
QB2=QB1+32*64*1024
KB1=QB2+32*64*256
KB2=KB1+32*64*1024
VB =KB2+32*64*256
PA1=VB+32*64*1280
PA2=PA1+32*64*1024
KVP=PA2+32*64*256
KVP_SZ=16*32*420*4
NRM=KVP+KVP_SZ
NRM_SZ=2*32*64*4
GATE=NRM+NRM_SZ
GATE_SZ=2048*4
OP=GATE+GATE_SZ
OP_SZ=2048*1280*2
WS_END=OP+OP_SZ
import math
QSCALE=(20**-0.5)*math.log2(math.e)
```

```python
import sys
sys.path.insert(0,'dev')
from asmlib import *
import k1
def main(out, which=('k1',)):
    hdr=open('gated_mix__linear_attn_block__mha_block__prompt.s.ref').read().split('\n')
    head=[l for l in hdr if l.startswith(';') and '@launch' not in l and 'TODO' not in l]
    head=head[:13]
    A=Asm()
    launches=[]; descs=[]
    mods={'k1':k1}
    try:
        import k2; mods['k2']=k2
    except ImportError: pass
    try:
        import k3; mods['k3']=k3
    except ImportError: pass
    for w in which:
        m=mods[w]
        getattr(m,'gen_'+w)(A)
        launches.append(getattr(m,w.upper()+'_LAUNCH'))
        descs.append(getattr(m,w+'_desc')())
    txt='\n'.join(head)+'\n'+'\n'.join(launches)+'\n'
    txt+='.amdgcn_target "amdgcn-amd-amdhsa--gfx950"\n.text\n'
    txt+=A.text()
    txt+='.section .rodata,"a"\n'
    for d in descs:
        txt+='.p2align 6\n'+d
    open(out,'w').write(txt)
if __name__=='__main__':
    out=sys.argv[1]
    which=sys.argv[2].split(',')
    main(out,which)
```

```python
class Asm:
    def __init__(self):
        self.lines=[]
        self.nlabel=0
    def e(self, s):
        self.lines.append('    '+s)
    def c(self, s):
        self.lines.append('    ; '+s)
    def label(self, name):
        self.lines.append(name+':')
    def newlabel(self, base='L'):
        self.nlabel+=1
        return f'{base}_{self.nlabel}'
    def nop(self, n):
        while n>0:
            k=min(n,16)
            self.e(f's_nop {k-1}')
            n-=k
    def text(self):
        return '\n'.join(self.lines)+'\n'

def v(i,n=1):
    return f'v{i}' if n==1 else f'v[{i}:{i+n-1}]'
def a(i,n=1):
    return f'a{i}' if n==1 else f'a[{i}:{i+n-1}]'
def s(i,n=1):
    return f's{i}' if n==1 else f's[{i}:{i+n-1}]'

def srd(A, dst, base, size):
    A.e(f's_mov_b32 {s(dst)}, {s(base)}')
    A.e(f's_and_b32 {s(dst+1)}, {s(base+1)}, 0xffff')
    A.e(f's_mov_b32 {s(dst+2)}, {size}')
    A.e(f's_mov_b32 {s(dst+3)}, 0x00020000')

import os
STAMP=bool(int(os.environ.get('STAMP','0')))
TS_OFF=32*1024*1024
def stamp_start(A):
    if STAMP:
        A.e('s_memrealtime s[90:91]')
        A.e('s_memtime s[94:95]')
def stamp_mid(A,i):
    if STAMP:
        A.e('s_waitcnt lgkmcnt(0)')
        A.e(f's_memrealtime s[{70+2*i}:{71+2*i}]')
def stamp_end(A, kidx, wsbase, wave_sgpr):
    if STAMP:
        A.e('s_waitcnt vmcnt(0) lgkmcnt(0)')
        A.e('s_memrealtime s[92:93]')
        A.e('s_memtime s[88:89]')
        A.e('s_waitcnt lgkmcnt(0)')
        A.e(f's_mov_b32 s96, s{wsbase}')
        A.e(f's_and_b32 s97, s{wsbase+1}, 0xffff')
        A.e(f's_mov_b32 s98, {TS_OFF+1024*1024}')
        A.e('s_mov_b32 s99, 0x00020000')
        A.e(f's_lshl_b32 s86, s{wave_sgpr}, 6')
        A.e('s_lshl_b32 s87, s2, 10')
        A.e('s_add_u32 s86, s86, s87')
        A.e(f's_add_u32 s86, s86, {TS_OFF+kidx*256*1024}')
        A.e('v_mov_b32 v0, s90'); A.e('v_mov_b32 v1, s91'); A.e('v_mov_b32 v2, s92'); A.e('v_mov_b32 v3, s93')
        A.e('v_mov_b32 v4, s94'); A.e('v_mov_b32 v5, s95'); A.e('v_mov_b32 v6, s88'); A.e('v_mov_b32 v7, s89')
        A.e('v_mov_b32 v8, s70'); A.e('v_mov_b32 v9, s71'); A.e('v_mov_b32 v10, s72'); A.e('v_mov_b32 v11, s73')
        A.e('v_mov_b32 v12, s74'); A.e('v_mov_b32 v13, s75'); A.e('v_mov_b32 v14, s76'); A.e('v_mov_b32 v15, s77')
        A.e('v_mov_b32 v16, 0')
        A.e('s_mov_b64 exec, 1')
        for i in range(4):
            A.e(f'buffer_store_dwordx4 v[{4*i}:{4*i+3}], v16, s[96:99], s86 offen offset:{16*i}')
```

```python
from asmlib import *
from layout import *
import struct, os
def f2u(x):
    return struct.unpack('<I', struct.pack('<f', x))[0]
LOG2E=1.4426950408889634
STF=os.environ.get('STFLAGS','')

WSZ=32768
XOFF=131072
def gen_k1(A, name='k1_kernel'):
    e=A.e
    A.lines.append('.p2align 8')
    A.lines.append(f'.globl {name}')
    A.lines.append(f'.type {name},@function')
    A.label(name)
    e('s_cmp_ge_u32 s2, 240')
    e(f's_cbranch_scc1 {name}_done')
    stamp_start(A)
    e('s_load_dwordx4 s[4:7], s[0:1], 0')
    e('s_load_dwordx2 s[8:9], s[0:1], 32')
    e('s_load_dwordx2 s[10:11], s[0:1], 48')
    e('s_load_dwordx2 s[12:13], s[0:1], 72')
    e('s_and_b32 s3, s2, 7')
    e('s_lshr_b32 s19, s2, 3')
    e('s_mul_i32 s3, s3, 30')
    e('s_add_u32 s3, s3, s19')
    e('s_cmp_ge_u32 s3, 120')
    e('s_cselect_b32 s14, 8, 0')
    e('s_cselect_b32 s19, 120, 0')
    e('s_sub_u32 s3, s3, s19')
    e('s_lshr_b32 s15, s3, 3')
    e('s_and_b32 s19, s3, 7')
    e('s_add_u32 s14, s14, s19')
    e('v_lshrrev_b32 v2, 6, v0')
    e('v_and_b32 v1, 63, v0')
    e('s_nop 0')
    e('v_readfirstlane_b32 s18, v2')
    e('s_waitcnt lgkmcnt(0)')
    srd(A,20,4,2048*1280)
    srd(A,24,6,640*3840)
    srd(A,36,8,640*3840)
    srd(A,28,12,WS_END)
    srd(A,32,10,1280)
    e('s_lshr_b32 s16, s18, 2')
    e('s_and_b32 s17, s18, 3')
    e('s_cmp_ge_u32 s15, 5')
    e('s_cselect_b32 s40, 1, 0')
    e('s_cmp_ge_u32 s15, 10')
    e('s_cselect_b32 s40, 2, s40')
    e('s_mul_i32 s41, s40, 5')
    e('s_sub_u32 s41, s15, s41')
    e('s_lshl_b32 s42, s14, 7')
    e('s_lshl_b32 s43, s15, 4')
    e('s_add_u32 s42, s42, s43')
    e('s_lshl_b32 s43, s18, 1')
    e('s_add_u32 s42, s42, s43')
    e('s_mul_i32 s43, s42, 1280')
    e('v_lshlrev_b32 v5, 2, v1')
    e('v_lshrrev_b32 v2, 4, v1')
    e('v_and_b32 v3, 15, v1')
    e('s_lshl_b32 s44, s18, 3')
    e('s_lshl_b32 s45, s15, 8')
    for i in range(2):
        e(f'v_add_u32 v4, {4*i}, v2')
        e('v_add_u32 v4, s44, v4')
        e('v_and_b32 v6, 7, v4')
        e('v_lshlrev_b32 v6, 1, v6')
        e('v_xor_b32 v6, v6, v3')
        e('v_and_b32 v7, 32, v4')
        e('v_and_b32 v8, 3, v4')
        e('v_add_u32 v7, v7, v8')
        e('v_bfe_u32 v8, v4, 2, 2')
        e('v_lshl_add_u32 v7, v8, 3, v7')
        e('v_bfe_u32 v8, v4, 4, 1')
        e('v_lshl_add_u32 v7, v8, 2, v7')
        e('v_mul_u32_u24 v7, 3840, v7')
        e('v_lshl_add_u32 v7, v6, 4, v7')
        e(f'v_add_u32 v{10+i}, s45, v7')
    e('v_lshrrev_b32 v2, 3, v1')
    e('v_and_b32 v3, 7, v1')
    e('s_lshl_b32 s44, s18, 4')
    e('s_lshl_b32 s45, s14, 7')
    for i in range(2):
        e(f'v_add_u32 v4, {8*i}, v2')
        e('v_add_u32 v4, s44, v4')
        e('v_bfe_u32 v6, v4, 1, 3')
        e('v_xor_b32 v6, v6, v3')
        e('v_add_u32 v7, s45, v4')
        e('v_mul_u32_u24 v7, 1280, v7')
        e(f'v_lshl_add_u32 v{12+i}, v6, 4, v7')
    e('v_and_b32 v2, 15, v1')
    e('v_lshrrev_b32 v3, 4, v1')
    e('v_lshrrev_b32 v4, 1, v2')
    e('v_xor_b32 v4, v4, v3')
    e('s_lshl_b32 s44, s16, 13')
    e(f's_add_u32 s44, s44, {XOFF}')
    e('v_lshlrev_b32 v6, 7, v2')
    e('v_add_u32 v6, s44, v6')
    e('v_lshl_add_u32 v14, v4, 4, v6')
    e('v_xor_b32 v4, 4, v4')
    e('v_lshl_add_u32 v15, v4, 4, v6')
    e('v_lshrrev_b32 v4, 2, v1')
    e('v_and_b32 v6, 7, v4')
    e('v_lshlrev_b32 v7, 8, v4')
    e('v_and_b32 v8, 3, v1')
    e('v_lshl_add_u32 v7, v8, 3, v7')
    e('s_lshr_b32 s44, s17, 1')
    e('s_lshl_b32 s44, s44, 14')
    e('v_add_u32 v7, s44, v7')
    e('s_and_b32 s44, s17, 1')
    e('s_lshl_b32 s44, s44, 2')
    for tt in range(4):
        e(f's_add_u32 s45, s44, {tt}')
        e('v_xor_b32 v8, s45, v6')
        e(f'v_lshl_add_u32 v{16+tt}, v8, 5, v7')
    for i in range(2): e(f'v_add_u32 v{20+i}, 16384, v{14+i}')
    WA_=[16,22,26,244]
    for b in (1,2,3):
        for i in range(4):
            e(f'v_add_u32 v{WA_[b]+i}, {b*WSZ}, v{16+i}')
    XA_=[14,20]
    e('s_lshl_b32 s46, s18, 11')
    e('v_lshlrev_b32 v30, 4, v1')
    e('v_add_u32 v30, s46, v30')
    e(f'v_add_u32 v30, {XOFF}, v30')
    XS=lambda c,i:160+(c*2+i)*4
    def wgroup(c):
        out=[]
        b=c%4
        out.append([f's_mov_b32 s47, {c*64*3840}'])
        for m,sr in enumerate((24,36)):
            for i in range(2):
                out.append([f's_add_u32 m0, s46, {b*WSZ+m*16384+i*1024}','s_nop 0',
                            f'buffer_load_dwordx4 v{10+i}, s[{sr}:{sr+3}], s47 offen lds'])
        return out
    def xload(c):
        for i in range(2):
            e(f'buffer_load_dwordx4 v[{XS(c,i)}:{XS(c,i)+3}], v{12+i}, s[20:23], 0 offen offset:{c*128}')
    TOUCH=int(os.environ.get('TOUCH','1'))
    def xops(c):
        return [[f'buffer_load_dwordx4 v[{XS(c,i)}:{XS(c,i)+3}], v{12+i}, s[20:23], 0 offen offset:{c*128}'] for i in range(2)]
    prolog=[]
    def emit_ops(ops,tag,log):
        for o in ops:
            for x_ in o:
                e(x_)
                if x_.startswith('buffer_'): log.append(tag)
    if TOUCH:
        e('v_lshlrev_b32 v2, 7, v0')
        e('s_mul_i32 s50, s2, 10240')
        e('s_mul_i32 s51, s2, 11264')
        e('v_cmp_gt_u32 vcc, 80, v0')
        e('s_and_saveexec_b64 s[52:53], vcc')
        tl=A.newlabel('k1t')
        e(f's_cbranch_execz {tl}')
        e('buffer_load_dword v240, v2, s[24:27], s50 offen')
        e('buffer_load_dword v241, v2, s[36:39], s50 offen')
        A.label(tl)
        e('s_mov_b64 exec, s[52:53]')
        e('v_cmp_gt_u32 vcc, 88, v0')
        e('s_and_saveexec_b64 s[52:53], vcc')
        tl=A.newlabel('k1t')
        e(f's_cbranch_execz {tl}')
        e('buffer_load_dword v242, v2, s[20:23], s51 offen')
        A.label(tl)
        e('s_mov_b64 exec, s[52:53]')
    for c in range(2):
        emit_ops(xops(c),('x',c),prolog)
        emit_ops(wgroup(c),('W',c),prolog)
    e('s_lshr_b32 s49, s17, 1')
    e('s_cmp_eq_u32 s40, 0')
    e(f's_cbranch_scc1 {name}_WX')
    e('s_cmp_eq_u32 s40, 1')
    e('s_cselect_b32 s50, s49, 0')
    e('s_cmp_eq_u32 s50, 1')
    e(f's_cbranch_scc1 {name}_WX')

    XF=lambda s_,mt:32+s_*32+mt*4
    WFr=lambda s_,tt:48+s_*32+tt*4
    ACC=lambda mt,tt:96+(mt*4+tt)*4
    def mainloop(wx):
        EXP=os.environ.get('EXP','')
        def reads(c,ks2,s_):
            if 'noread' in EXP: return
            for mt in range(4):
                e(f'ds_read_b128 v[{XF(s_,mt)}:{XF(s_,mt)+3}], v{XA_[c%2]+ks2} offset:{mt*2048}')
            for tt in range(4):
                for hf in range(2):
                    e(f'ds_read_b64_tr_b16 v[{WFr(s_,tt)+2*hf}:{WFr(s_,tt)+2*hf+1}], v{WA_[c%4]+tt} offset:{(ks2*32+hf*16)*256}')
        def mfmas(s_,first,extra,log):
            def pop():
                o,tag=extra.pop(0)
                for x_ in o:
                    e(x_)
                    if x_.startswith('buffer_'): log.append(tag)
            n=0
            for mt in range(4):
                for tt in range(4):
                    a_=ACC(mt,tt)
                    cc='0' if first else f'v[{a_}:{a_+3}]'
                    xr=f'v[{XF(s_,mt)}:{XF(s_,mt)+3}]'; wr=f'v[{WFr(s_,tt)}:{WFr(s_,tt)+3}]'
                    if not ('nomfma' in EXP and not first):
                        if wx: e(f'v_mfma_f32_16x16x32_bf16 v[{a_}:{a_+3}], {wr}, {xr}, {cc}')
                        else:  e(f'v_mfma_f32_16x16x32_bf16 v[{a_}:{a_+3}], {xr}, {wr}, {cc}')
                    if extra: pop()
            while extra: pop()
        log=list(prolog)
        def tagged(ops,tag): return [(o,tag) for o in ops]
        def sync(c):
            last=max(i for i,t in enumerate(log) if t in (('x',c),('W',c)))
            assert sum(1 for t in log if t==('x',c))==2 and sum(1 for t in log if t==('W',c))==4, (c,log)
            cnt=len(log)-1-last
            e(f's_waitcnt vmcnt({cnt})')
            for i in range(2):
                e(f'ds_write_b128 v30, v[{XS(c,i)}:{XS(c,i)+3}] offset:{(c%2)*16384+i*1024}')
            e('s_waitcnt lgkmcnt(0)')
            if 'nobar' not in EXP: e('s_barrier')
        gl=[[f'buffer_load_dword v{160+i}, v5, s[32:35], 0 offen offset:{i*256}'] for i in range(5)]
        gl+=[[f'buffer_load_dword v{165+rr*5+i}, v5, s[20:23], s43 offen offset:{rr*1280+i*256}'] for rr in range(2) for i in range(5)]
        first_half={0:[('W',2),('x',2),('W',3),('x',3)]}
        second_half={0:[('W',4),('x',4),('x',5)],1:[('W',5),('x',6),('x',7)],2:[('W',6),('x',8),('x',9)],3:[('W',7)],4:[('W',8)],5:[('W',9),('g',0)]}
        def mk(lst):
            out=[]
            for k_,c_ in lst:
                ops = wgroup(c_) if k_=='W' else (xops(c_) if k_=='x' else gl)
                out+=tagged(ops,(k_,c_))
            return out
        sync(0)
        stamp_mid(A,0)
        reads(0,0,0)
        for c in range(10):
            reads(c,1,1)
            e('s_waitcnt lgkmcnt(12)')
            mfmas(0,c==0,mk(first_half.get(c,[])),log)
            if c<9:
                sync(c+1)
                reads(c+1,0,0)
            else:
                e('s_waitcnt lgkmcnt(0)')
            mfmas(1,False,mk(second_half.get(c,[])),log)
        A.nop(10)
        stamp_mid(A,1)

    def consts():
        e(f's_mov_b32 s52, {f2u(LOG2E):#x}')
        e(f's_mov_b32 s53, {f2u(1e-6):#x}')
        e(f's_mov_b32 s54, {f2u(QSCALE):#x}')
    def phi(regs,tmp):
        for i,r in enumerate(regs): e(f'v_mul_f32 v{tmp+i}, s52, v{r}')
        for i,r in enumerate(regs): e(f'v_min_f32 v{tmp+i}, 0, v{tmp+i}')
        for i,r in enumerate(regs): e(f'v_exp_f32 v{tmp+i}, v{tmp+i}')
        for i,r in enumerate(regs): e(f'v_max_f32 v{r}, 0, v{r}')
        for i,r in enumerate(regs): e(f'v_add_f32 v{r}, v{r}, v{tmp+i}')
        for i,r in enumerate(regs): e(f'v_add_f32 v{r}, s53, v{r}')
    def gate_epilogue():
        lab=A.newlabel('k1ng')
        e('s_waitcnt vmcnt(0)')
        e('s_cmp_ge_u32 s15, 8')
        e(f's_cbranch_scc1 {lab}')
        e('s_mov_b32 s55, 0xffff0000')
        for rr in range(2):
            d=20+rr
            first=True
            for i in range(5):
                g=160+i; x=165+rr*5+i
                e(f'v_lshlrev_b32 v22, 16, v{g}')
                e(f'v_lshlrev_b32 v23, 16, v{x}')
                if first: e(f'v_mul_f32 v{d}, v22, v23')
                else: e(f'v_fmac_f32 v{d}, v22, v23')
                first=False
                e(f'v_and_b32 v22, s55, v{g}')
                e(f'v_and_b32 v23, s55, v{x}')
                e(f'v_fmac_f32 v{d}, v22, v23')
        for sh in (8,4,2,1):
            A.nop(2)
            for rr in range(2):
                d=20+rr
                e(f'v_add_f32_dpp v{d}, v{d}, v{d} row_ror:{sh} row_mask:0xf bank_mask:0xf')
        A.nop(1)
        for rr in range(2):
            for q in range(4):
                e(f'v_readlane_b32 s{56+rr*4+q}, v{20+rr}, {q*16}')
        A.nop(2)
        for rr in range(2):
            d=20+rr
            e(f'v_mov_b32 v{d}, s{56+rr*4}')
            for q in range(1,4):
                e(f'v_add_f32 v{d}, s{56+rr*4+q}, v{d}')
            e(f'v_mul_f32 v{d}, s52, v{d}')
            e(f'v_sub_f32 v{d}, 0, v{d}')
            e(f'v_exp_f32 v{d}, v{d}')
            e('s_nop 0')
            e(f'v_add_f32 v{d}, 1.0, v{d}')
            e(f'v_rcp_f32 v{d}, v{d}')
        e('s_nop 0')
        e('v_cmp_eq_u32 vcc, 1, v1')
        A.nop(2)
        e('v_cndmask_b32 v20, v20, v21, vcc')
        e('v_add_u32 v22, s42, v1')
        e('v_lshlrev_b32 v22, 2, v22')
        e(f's_mov_b32 s55, {GATE}')
        e('s_mov_b64 exec, 3')
        e(f'buffer_store_dword v20, v22, s[28:31], s55 offen{STF}')
        e('s_mov_b64 exec, -1')
        A.label(lab)

    def wx_epi(kind):
        base={'Aq':PA,'Bq':QB,'Bk':KB}[kind]
        allregs=[ACC(mt,tt)+r for mt in range(4) for tt in range(4) for r in range(4)]
        if kind=='Aq':
            for h in range(4): phi(allregs[16*h:16*h+16],32)
        if kind=='Bq':
            for r in allregs: e(f'v_mul_f32 v{r}, s54, v{r}')
        e('s_lshl_b32 s56, s41, 5')
        e('s_and_b32 s57, s17, 1')
        e('s_lshl_b32 s57, s57, 4')
        e('s_add_u32 s56, s56, s57')
        e('v_add_u32 v4, s56, v3')
        e('s_lshl_b32 s57, s14, 2')
        e('s_lshl_b32 s58, s16, 1')
        e('s_add_u32 s57, s57, s58')
        if kind=='Bk':
            e('v_and_b32 v5, 8, v2')
            e('v_lshlrev_b32 v5, 1, v5')
            e('v_and_b32 v6, 7, v2')
            e('v_add_u32 v5, v5, v6')
            dodd=8
        else:
            e('v_mov_b32 v5, v2')
            dodd=16
        e(f's_mov_b32 s59, {base}')
        for tt in range(4):
            e(f'v_add_u32 v6, {4*tt}, v4')
            e('v_mul_u32_u24 v7, 205, v6')
            e('v_lshrrev_b32 v7, 10, v7')
            e('v_mul_u32_u24 v8, 5, v7')
            e('v_sub_u32 v8, v6, v8')
            e('v_lshlrev_b32 v9, 6, v7')
            e('v_add_u32 v9, s57, v9')
            e('v_mul_u32_u24 v9, 1280, v9')
            if kind=='Aq':
                e('v_and_b32 v10, 1, v8')
                e('v_lshrrev_b32 v11, 1, v8')
            else:
                e('v_lshrrev_b32 v10, 1, v8')
                e('v_and_b32 v11, 1, v8')
            e('v_lshlrev_b32 v10, 9, v10')
            e('v_lshl_add_u32 v10, v11, 3, v10')
            e('v_lshl_add_u32 v10, v5, 4, v10')
            e('v_lshlrev_b32 v11, 3, v5')
            e('v_add_u32 v11, 1024, v11')
            e('v_cmp_eq_u32 vcc, 4, v8')
            A.nop(2)
            e('v_cndmask_b32 v12, v10, v11, vcc')
            e(f'v_add_u32 v10, {dodd*16}, v10')
            e(f'v_add_u32 v11, {dodd*8}, v11')
            e('v_cndmask_b32 v13, v10, v11, vcc')
            e('v_add_u32 v12, v12, v9')
            e('v_add_u32 v13, v13, v9')
            for mt in range(4):
                a_=ACC(mt,tt)
                pk=32+(tt*4+mt)*2
                e(f'v_cvt_pk_bf16_f32 v{pk}, v{a_}, v{a_+1}')
                e(f'v_cvt_pk_bf16_f32 v{pk+1}, v{a_+2}, v{a_+3}')
                e(f'buffer_store_dwordx2 v[{pk}:{pk+1}], v{12+(mt&1)}, s[28:31], s59 offen offset:{(mt>>1)*1280}{STF}')
            if kind!='Aq':
                for mt in range(4):
                    a_=ACC(mt,tt)
                    e(f'v_mul_f32 v{14+mt}, v{a_}, v{a_}')
                    for r in range(1,4): e(f'v_fmac_f32 v{14+mt}, v{a_+r}, v{a_+r}')
                e('v_max_f32 v14, v14, v15')
                e('v_max3_f32 v14, v16, v17, v14')
                for sh in (8,4,2,1):
                    A.nop(2)
                    e(f'v_max_f32_dpp v14, v14, v14 row_ror:{sh} row_mask:0xf bank_mask:0xf')
                e('s_lshl_b32 s60, s14, 1')
                e('s_add_u32 s60, s60, s16')
                e('s_lshl_b32 s60, s60, 2')
                e(f's_add_u32 s60, s60, {NRM+(160*32*4 if kind=="Bk" else 0)}')
                e('v_lshlrev_b32 v15, 7, v6')
                e('s_mov_b32 exec_lo, 0x00010001')
                e('s_mov_b32 exec_hi, 0x00010001')
                e(f'buffer_store_dword v14, v15, s[28:31], s60 offen{STF}')
                e('s_mov_b64 exec, -1')
                A.nop(1)

    mainloop(False)
    consts()
    gate_epilogue()
    e('v_and_b32 v2, 15, v1')
    e('v_lshrrev_b32 v3, 4, v1')
    e(f's_mov_b32 s59, {PKT}')
    e('s_cmp_eq_u32 s40, 2')
    e(f's_cselect_b32 s59, {VAT}, s59')
    e('s_lshl_b32 s60, s40, 1')
    e('s_add_u32 s60, s60, s49')
    e('s_cmp_eq_u32 s60, 5')
    e(f's_cselect_b32 s59, {VB}, s59')
    lab=A.newlabel('k1nophi')
    e('s_cmp_eq_u32 s40, 1')
    e(f's_cbranch_scc0 {lab}')
    allregs=[ACC(mt,tt)+r for mt in range(4) for tt in range(4) for r in range(4)]
    for h in range(4): phi(allregs[16*h:16*h+16],32)
    A.label(lab)
    e('s_lshl_b32 s56, s41, 7')
    e('s_and_b32 s57, s17, 1')
    e('s_lshl_b32 s57, s57, 6')
    e('s_add_u32 s56, s56, s57')
    e('v_add_u32 v4, s56, v2')
    e('s_lshl_b32 s57, s14, 2')
    e('s_lshl_b32 s58, s16, 1')
    e('s_add_u32 s57, s57, s58')
    e('v_mul_u32_u24 v5, 320, v3')
    for tt in range(4):
        e(f'v_add_u32 v6, {16*tt}, v4')
        e('v_mul_u32_u24 v7, 3277, v6')
        e('v_lshrrev_b32 v7, 16, v7')
        e('v_mul_u32_u24 v8, 20, v7')
        e('v_sub_u32 v8, v6, v8')
        e('v_lshlrev_b32 v9, 6, v7')
        e('v_add_u32 v9, s57, v9')
        e('v_mul_u32_u24 v9, 1280, v9')
        e('v_add_u32 v9, v9, v5')
        e('v_lshl_add_u32 v9, v8, 4, v9')
        for up in range(2):
            pk=32+(tt*2+up)*4
            for a2 in range(2):
                a_=ACC(2*up+a2,tt)
                e(f'v_cvt_pk_bf16_f32 v{pk+2*a2}, v{a_}, v{a_+1}')
                e(f'v_cvt_pk_bf16_f32 v{pk+2*a2+1}, v{a_+2}, v{a_+3}')
            e(f'buffer_store_dwordx4 v[{pk}:{pk+3}], v9, s[28:31], s59 offen offset:{up*1280}{STF}')
        A.nop(1)
    e(f's_branch {name}_fin')

    A.label(f'{name}_WX')
    mainloop(True)
    consts()
    gate_epilogue()
    e('v_and_b32 v2, 15, v1')
    e('v_lshrrev_b32 v3, 4, v1')
    e('s_cmp_eq_u32 s40, 1')
    e(f's_cbranch_scc1 {name}_Bk')
    e('s_cmp_eq_u32 s49, 1')
    e(f's_cbranch_scc1 {name}_Bq')
    wx_epi('Aq')
    e(f's_branch {name}_fin')
    A.label(f'{name}_Bq')
    wx_epi('Bq')
    e(f's_branch {name}_fin')
    A.label(f'{name}_Bk')
    wx_epi('Bk')
    A.label(f'{name}_fin')
    stamp_end(A,0,12,18)
    A.label(f'{name}_done')
    e('s_endpgm')

def k1_desc(name='k1_kernel'):
    return f'''.amdhsa_kernel {name}
  .amdhsa_next_free_vgpr 256
  .amdhsa_next_free_sgpr 102
  .amdhsa_accum_offset 256
  .amdhsa_group_segment_fixed_size 0
  .amdhsa_kernarg_size 80
  .amdhsa_user_sgpr_count 2
  .amdhsa_user_sgpr_kernarg_segment_ptr 1
  .amdhsa_system_sgpr_workgroup_id_x 1
.end_amdhsa_kernel
'''
K1_LAUNCH='; @launch kernel=k1_kernel grid=(240,1,1) block=(512,1,1) lds=163840'
```

```python
from asmlib import *
from layout import *
import struct, os
def f2u(x):
    return struct.unpack('<I', struct.pack('<f', x))[0]
STF=os.environ.get('STFLAGS','')
LDS_MAX=0
LDS_KV=8192
LDS_RED=32768
K2_LDS=LDS_RED+98304
THRESH=48.0
PF=int(os.environ.get('PF','0'))

def gen_k2(A, name='k2_kernel'):
    e=A.e
    A.lines.append('.p2align 8')
    A.lines.append(f'.globl {name}')
    A.lines.append(f'.type {name},@function')
    A.label(name)
    e('s_cmp_ge_u32 s2, 256')
    e(f's_cbranch_scc1 {name}_done')
    stamp_start(A)
    e('s_load_dwordx2 s[4:5], s[0:1], 72')
    e('s_load_dwordx2 s[48:49], s[0:1], 16')
    e('s_load_dwordx2 s[50:51], s[0:1], 40')
    e('s_and_b32 s3, s2, 7')
    e('s_lshr_b32 s6, s2, 3')
    e('s_lshl_b32 s12, s3, 2')
    e('s_lshr_b32 s7, s6, 3')
    e('s_add_u32 s12, s12, s7')
    e('s_and_b32 s13, s6, 7')
    e('v_lshrrev_b32 v2, 6, v0')
    e('v_and_b32 v1, 63, v0')
    e('s_nop 0')
    e('v_readfirstlane_b32 s14, v2')
    e('s_waitcnt lgkmcnt(0)')
    srd(A,8,4,WS_END)
    e('s_and_b32 s15, s14, 1')
    e('s_lshr_b32 s16, s14, 1')
    Q1=lambda qi:16+qi*4
    Q2=lambda qi:32+qi*4
    KF1=lambda b:48+16*b
    KF2=lambda b:52+16*b
    VF1=lambda b:56+16*b
    VF2=lambda b:60+16*b
    SB=lambda b:80+16*b
    PB=lambda b:112+8*b
    OA=lambda qi:128+16*qi
    KVA=192
    PKF=lambda b:208+4*b
    VAF=lambda b:216+4*b
    e('s_mov_b32 s18, 0x000fffff')
    e('s_mov_b32 s19, 0x000fffff')
    e('s_lshl_b32 s52, s2, 3')
    e('s_add_u32 s52, s52, s14')
    e('s_mul_i32 s53, s52, 5243')
    e('s_lshr_b32 s53, s53, 20')
    e('s_mul_i32 s54, s53, 200')
    e('s_sub_u32 s54, s52, s54')
    e('s_mul_i32 s55, s54, 52429')
    e('s_lshr_b32 s55, s55, 18')
    e('s_mul_i32 s56, s55, 5')
    e('s_sub_u32 s56, s54, s56')
    e('s_cmp_lt_u32 s55, 20')
    e('s_cselect_b32 s58, s48, s50')
    e('s_cselect_b32 s59, s49, s51')
    e('s_cselect_b32 s57, 0, 20')
    e('s_sub_u32 s57, s55, s57')
    srd(A,60,58,640*1280)
    e('v_and_b32 v2, 15, v1')
    e('v_lshrrev_b32 v3, 4, v1')
    e('s_lshl_b32 s57, s57, 5')
    e('v_lshlrev_b32 v4, 3, v3')
    e('v_add_u32 v4, s57, v4')
    e('v_mul_u32_u24 v4, 1280, v4')
    e('s_mul_i32 s64, s53, 160')
    e('s_lshl_b32 s65, s56, 5')
    e('s_add_u32 s64, s64, s65')
    e('v_lshl_add_u32 v4, v2, 1, v4')
    e('v_add_u32 v4, s64, v4')
    labw=A.newlabel('k2now')
    e('s_cmp_ge_u32 s52, 1600')
    e(f's_cbranch_scc1 {labw}')
    for j in range(8):
        off=j*1280
        if off<4096:
            e(f'buffer_load_ushort v{244+j}, v4, s[60:63], 0 offen offset:{off}')
        else:
            e(f's_mov_b32 s65, {off}')
            e(f'buffer_load_ushort v{244+j}, v4, s[60:63], s65 offen')
    A.label(labw)
    for qi in range(4):
        for r in range(4): e(f'v_mov_b32 v{Q2(qi)+r}, 0')
    e('v_lshlrev_b32 v5, 4, v1')
    e('v_lshlrev_b32 v6, 3, v1')
    e('v_and_b32 v7, 31, v1')
    e('v_lshrrev_b32 v8, 5, v1')
    e('v_mul_u32_u24 v9, 320, v8')
    e('v_lshl_add_u32 v9, v7, 4, v9')
    e('v_cmp_gt_u32 vcc, 32, v1')
    e('v_mov_b32 v10, 0x3f803f80')
    A.nop(2)
    e('v_cndmask_b32 v11, 0, v10, vcc')
    e('v_cmp_eq_u32 vcc, 20, v7')
    A.nop(2)
    e('v_cndmask_b32 v12, 0, v10, vcc')
    for b in range(2):
        e(f'v_mov_b32 v{KF2(b)}, 0'); e(f'v_mov_b32 v{KF2(b)+1}, 0')
        e(f'v_mov_b32 v{KF2(b)+2}, v11'); e(f'v_mov_b32 v{KF2(b)+3}, 0')
        for r in range(4):
            e(f'v_mov_b32 v{VF1(b)+r}, v12'); e(f'v_mov_b32 v{VF2(b)+r}, v12')
            e(f'v_mov_b32 v{PKF(b)+r}, 0'); e(f'v_mov_b32 v{VAF(b)+r}, v12')
    e('s_lshl_b32 s22, s12, 6')
    e('s_lshl_b32 s23, s13, 3')
    e('s_add_u32 s22, s22, s23')
    e('s_lshl_b32 s23, s15, 2')
    e('s_add_u32 s23, s22, s23')
    e('s_mul_i32 s24, s23, 1280')
    e(f's_add_u32 s24, s24, {QB}')
    for qi in range(4):
        e(f'buffer_load_dwordx4 v[{Q1(qi)}:{Q1(qi)+3}], v5, s[8:11], s24 offen offset:{qi*1280}')
    e('s_mov_b32 exec_hi, 0')
    e('s_add_u32 s25, s24, 1024')
    for qi in range(4):
        e(f'buffer_load_dwordx2 v[{Q2(qi)}:{Q2(qi)+1}], v6, s[8:11], s25 offen offset:{qi*1280}')
    e('s_mov_b32 exec_hi, -1')
    e('v_mul_u32_u24 v13, 160*128, v8')
    e('v_lshl_add_u32 v13, v7, 2, v13')
    e('s_mul_i32 s26, s12, 640')
    e(f's_add_u32 s26, s26, {NRM}')
    for g in range(5):
        e(f'buffer_load_dword v{236+g}, v13, s[8:11], s26 offen offset:{g*128}')
    e('s_add_u32 s28, s23, s16')
    e('s_mul_i32 s29, s28, 1280')
    e(f's_add_u32 s29, s29, {PA}')
    e('buffer_load_dwordx4 v[224:227], v5, s[8:11], s29 offen')
    for r in range(4): e(f'v_mov_b32 v{228+r}, 0')
    e('s_mov_b32 exec_hi, 0')
    e('buffer_load_dwordx2 v[228:229], v6, s[8:11], s29 offen offset:1024')
    e('s_mov_b32 exec_hi, -1')
    e('s_lshl_b32 s30, s15, 2')
    e('s_add_u32 s30, s30, s16')
    e('s_lshl_b32 s30, s30, 5')
    e('s_lshl_b32 s31, s13, 8')
    e('s_add_u32 s30, s30, s31')
    e('v_add_u32 v233, s30, v7')
    e('v_lshlrev_b32 v234, 2, v233')
    e(f's_mov_b32 s31, {GATE}')
    e('buffer_load_dword v232, v234, s[8:11], s31 offen')
    e('s_lshl_b32 s32, s12, 6')
    e('s_lshl_b32 s33, s16, 4')
    e('s_add_u32 s32, s32, s33')
    e('s_mul_i32 s36, s32, 1280')
    e(f's_add_u32 s34, s36, {KB}')
    e(f's_add_u32 s36, s36, {VB}')
    e('s_mov_b32 s40, s34')
    e('s_lshl_b32 s32, s12, 6')
    e('s_lshl_b32 s33, s14, 3')
    e('s_add_u32 s32, s32, s33')
    e('s_mul_i32 s37, s32, 1280')
    e(f's_add_u32 s38, s37, {VAT}')
    e(f's_add_u32 s37, s37, {PKT}')
    def loadK(b):
        e(f'buffer_load_dwordx4 v[{KF1(b)}:{KF1(b)+3}], v5, s[8:11], s34 offen')
        e('s_mov_b32 exec_hi, 0')
        e(f'buffer_load_dwordx2 v[{KF2(b)}:{KF2(b)+1}], v6, s[8:11], s34 offen offset:1024')
        e('s_mov_b32 exec_hi, -1')
        e('s_add_u32 s34, s34, 1280')
    def loadV(b):
        e('s_mov_b64 exec, s[18:19]')
        e(f'buffer_load_dwordx4 v[{VF1(b)}:{VF1(b)+3}], v9, s[8:11], s36 offen')
        e(f'buffer_load_dwordx4 v[{VF2(b)}:{VF2(b)+3}], v9, s[8:11], s36 offen offset:640')
        e('s_mov_b64 exec, -1')
        e('s_add_u32 s36, s36, 1280')
    def loadA(b):
        e('s_mov_b64 exec, s[18:19]')
        e(f'buffer_load_dwordx4 v[{PKF(b)}:{PKF(b)+3}], v9, s[8:11], s37 offen')
        e(f'buffer_load_dwordx4 v[{VAF(b)}:{VAF(b)+3}], v9, s[8:11], s38 offen')
        e('s_mov_b64 exec, -1')
        e('s_add_u32 s37, s37, 640')
        e('s_add_u32 s38, s38, 640')
    loadK(0)
    loadV(0)
    loadA(0)
    if PF:
        e('s_mul_i32 s20, s12, 64*1280')
        e('s_mul_i32 s21, s14, 80*128')
        e('s_add_u32 s20, s20, s21')
        e('v_lshlrev_b32 v13, 7, v1')
        for reg,base in enumerate((KB,VB,PKT,VAT)):
            e(f's_add_u32 s21, s20, {base}')
            e(f'buffer_load_dword v{252+reg}, v13, s[8:11], s21 offen')
            e('s_add_u32 s21, s21, 8192')
            e('s_mov_b64 exec, 0xffff')
            e(f'buffer_load_dword v{252+reg}, v13, s[8:11], s21 offen')
            e('s_mov_b64 exec, -1')
    for i in range(64): e(f'v_mov_b32 v{128+i}, 0')
    for i in range(16): e(f'v_mov_b32 v{KVA+i}, 0')
    stamp_mid(A,0)
    e('s_waitcnt vmcnt(0)')
    stamp_mid(A,1)
    labw2=A.newlabel('k2now')
    e('s_cmp_ge_u32 s52, 1600')
    e(f's_cbranch_scc1 {labw2}')
    e('s_lshl_b32 s53, s52, 10')
    e(f's_add_u32 s53, s53, {WF}')
    for j in range(4):
        e(f'v_lshl_or_b32 v{244+j}, v{245+2*j}, 16, v{244+2*j}')
    e(f'buffer_store_dwordx4 v[244:247], v5, s[8:11], s53 offen{STF}')
    A.label(labw2)
    for sh in (8,4,2,1):
        A.nop(2)
        for g in range(5):
            e(f'v_max_f32_dpp v{236+g}, v{236+g}, v{236+g} row_ror:{sh} row_mask:0xf bank_mask:0xf')
    A.nop(1)
    for g in range(5):
        for q in range(4):
            e(f'v_readlane_b32 s{44+g*4+q}, v{236+g}, {q*16}')
    A.nop(3)
    for g in range(5):
        e(f's_max_u32 s{44+g*4}, s{44+g*4}, s{44+g*4+1}')
        e(f's_max_u32 s{44+g*4+2}, s{44+g*4+2}, s{44+g*4+3}')
    e('v_mov_b32 v14, s44')
    e('v_mov_b32 v15, s46')
    for g in range(1,5):
        e(f'v_add_f32 v14, s{44+g*4}, v14')
        e(f'v_add_f32 v15, s{44+g*4+2}, v15')
    e('v_mul_f32 v14, v14, v15')
    e('v_sqrt_f32 v14, v14')
    e('s_nop 0')
    e(f'v_mul_f32 v14, {f2u(1.02):#x}, v14')
    e('s_nop 0')
    e('v_readfirstlane_b32 s42, v14')
    A.nop(3)
    for qi in range(4): e(f'v_mov_b32 v{236+qi}, v14')
    e(f's_cmp_gt_u32 s42, {f2u(THRESH):#x}')
    e(f's_cbranch_scc0 {name}_main')
    for qi in range(4): e(f'v_mov_b32 v{236+qi}, 0xff800000')
    e('s_mov_b32 s34, s40')
    e('s_mov_b32 s43, 0')
    A.label(f'{name}_fb')
    loadK(1)
    e('s_waitcnt vmcnt(0)')
    for qi in range(4):
        e(f'v_mfma_f32_32x32x16_bf16 v[{SB(0)}:{SB(0)+15}], v[{KF1(1)}:{KF1(1)+3}], v[{Q1(qi)}:{Q1(qi)+3}], 0')
        e(f'v_mfma_f32_32x32x16_bf16 v[{SB(0)}:{SB(0)+15}], v[{KF2(1)}:{KF2(1)+3}], v[{Q2(qi)}:{Q2(qi)+3}], v[{SB(0)}:{SB(0)+15}]')
        A.nop(14)
        for i in range(8):
            e(f'v_max3_f32 v{236+qi}, v{SB(0)+2*i}, v{SB(0)+2*i+1}, v{236+qi}')
        A.nop(2)
    e('s_add_u32 s43, s43, 1')
    e('s_cmp_lt_u32 s43, 16')
    e(f's_cbranch_scc1 {name}_fb')
    for qi in range(4):
        e(f'v_mov_b32 v2, v{236+qi}')
        e(f'v_mov_b32 v3, v{236+qi}')
        A.nop(2)
        e('v_permlane32_swap_b32 v2, v3')
        A.nop(2)
        e(f'v_max_f32 v{236+qi}, v2, v3')
    e('s_lshl_b32 s44, s14, 10')
    e('v_lshlrev_b32 v2, 2, v1')
    e('v_add_u32 v3, s44, v2')
    for qi in range(4):
        e(f'ds_write_b32 v3, v{236+qi} offset:{LDS_MAX+qi*256}')
    e('s_waitcnt lgkmcnt(0)')
    e('s_barrier')
    e('s_lshl_b32 s44, s15, 10')
    e('v_add_u32 v3, s44, v2')
    for qi in range(4):
        for kc in range(4):
            e(f'ds_read_b32 v{240+kc}, v3 offset:{LDS_MAX+kc*2048+qi*256}')
        e('s_waitcnt lgkmcnt(0)')
        e(f'v_max3_f32 v{236+qi}, v240, v241, v242')
        e(f'v_max_f32 v{236+qi}, v{236+qi}, v243')
    e('s_mov_b32 s34, s40')
    loadK(0)
    e('s_waitcnt vmcnt(0)')
    A.label(f'{name}_main')
    e('s_mov_b32 exec_hi, 0')
    for qi in range(4):
        e(f'v_sub_f32 v2, 0, v{236+qi}')
        e('v_cvt_pk_bf16_f32 v3, v2, v2')
        e('v_lshlrev_b32 v3, 16, v3')
        e('v_sub_f32 v4, v2, v3')
        e(f'v_cvt_pk_bf16_f32 v{Q2(qi)+2}, v2, v4')
    e('s_mov_b32 exec_hi, -1')
    A.nop(2)
    def mf(d,a_,b_,c_):
        cc='0' if c_ is None else f'v[{c_}:{c_+15}]'
        e(f'v_mfma_f32_32x32x16_bf16 v[{d}:{d+15}], v[{a_}:{a_+3}], v[{b_}:{b_+3}], {cc}')
    mf(SB(0),KF1(0),Q1(0),None)
    mf(SB(0),KF2(0),Q2(0),SB(0))
    A.nop(16)
    e('s_mov_b32 s43, 0')
    for r in range(8): e(f'v_mov_b32 v{PB(1)+r}, 0')
    A.nop(2)
    stamp_mid(A,2)
    A.label(f'{name}_loop')
    def grp(sb,g):
        for i in range(4): e(f'v_exp_f32 v{sb+4*g+i}, v{sb+4*g+i}')
    def cv(sb,pb,g):
        e(f'v_cvt_pk_bf16_f32 v{pb+2*g}, v{sb+4*g}, v{sb+4*g+1}')
        e(f'v_cvt_pk_bf16_f32 v{pb+2*g+1}, v{sb+4*g+2}, v{sb+4*g+3}')
    for tb in range(2):
        for qi in range(4):
            n=tb*4+qi
            cur=SB(n%2); nx=SB((n+1)%2); P=PB(n%2); Pp=PB((n+1)%2)
            nb = tb if qi<3 else 1-tb
            nq=(qi+1)%4
            pq=(qi-1)%4; pbuf= tb if qi>0 else 1-tb
            if qi==3: e('s_waitcnt vmcnt(4)')
            mf(nx,KF1(nb),Q1(nq),None)
            if qi==0: loadK(1-tb)
            grp(cur,0); cv(cur,P,0)
            mf(nx,KF2(nb),Q2(nq),nx)
            grp(cur,1); cv(cur,P,1)
            mf(OA(pq),VF2(pbuf),Pp+4,OA(pq))
            if qi==1:
                e('s_waitcnt vmcnt(2)')
                mf(KVA,PKF(tb),VAF(tb),KVA)
                loadV(1-tb)
            if qi==2: loadA(1-tb)
            grp(cur,2); cv(cur,P,2)
            if qi==0: e('s_waitcnt vmcnt(4)')
            mf(OA(qi),VF1(tb),P,OA(qi))
            grp(cur,3); cv(cur,P,3)
    e('s_add_u32 s43, s43, 1')
    e('s_cmp_lt_u32 s43, 8')
    e(f's_cbranch_scc1 {name}_loop')
    A.nop(2)
    mf(OA(3),VF2(1),PB(1)+4,OA(3))
    A.nop(16)
    stamp_mid(A,3)
    e('s_waitcnt vmcnt(0)')
    for qi in range(4):
        e('s_lshl_b32 s44, s15, 2')
        e('s_add_u32 s44, s44, s16')
        e(f's_add_u32 s44, s44, {qi*8}')
        e('s_mul_i32 s44, s44, 3072')
        e(f's_add_u32 s44, s44, {LDS_RED}')
        e('v_add_u32 v2, s44, v5')
        for q in range(3):
            e(f'ds_write_b128 v2, v[{OA(qi)+4*q}:{OA(qi)+4*q+3}] offset:{q*1024}')
    e('s_mul_i32 s44, s14, 3072')
    e('v_add_u32 v2, s44, v5')
    for q in range(3):
        e(f'ds_write_b128 v2, v[{KVA+4*q}:{KVA+4*q+3}] offset:{LDS_KV+q*1024}')
    e('s_waitcnt lgkmcnt(0)')
    e('s_barrier')
    e('s_mul_i32 s44, s14, 12288')
    e(f's_add_u32 s44, s44, {LDS_RED}')
    e('v_add_u32 v2, s44, v5')
    for src in range(4):
        for q in range(3):
            e(f'ds_read_b128 v[{128+src*12+q*4}:{128+src*12+q*4+3}], v2 offset:{src*3072+q*1024}')
    for src in range(8):
        for q in range(3):
            e(f'ds_read_b128 v[{16+src*12+q*4}:{16+src*12+q*4+3}], v5 offset:{LDS_KV+src*3072+q*1024}')
    e('s_waitcnt lgkmcnt(0)')
    for st in (4,2,1):
        for src in range(st):
            for r in range(12):
                e(f'v_add_f32 v{16+src*12+r}, v{16+src*12+r}, v{16+(src+st)*12+r}')
    for i in range(6): e(f'v_cvt_pk_bf16_f32 v{48+i}, v{16+2*i}, v{17+2*i}')
    e('v_mov_b32 v54, 0'); e('v_mov_b32 v55, 0')
    A.nop(2)
    mf(80,48,224,None)
    mf(80,52,228,80)
    for r in range(12):
        e(f'v_add_f32 v{128+r}, v{128+r}, v{140+r}')
        e(f'v_add_f32 v{152+r}, v{152+r}, v{164+r}')
    for r in range(12):
        e(f'v_add_f32 v{128+r}, v{128+r}, v{152+r}')
    e('v_lshrrev_b32 v4, 4, v233')
    e('v_mul_u32_u24 v4, 40*1024, v4')
    e('v_and_b32 v10, 15, v233')
    e('v_lshl_add_u32 v4, v10, 4, v4')
    e('s_mul_i32 s44, s12, 20')
    e('v_lshlrev_b32 v10, 2, v8')
    e('v_add_u32 v10, s44, v10')
    e(f's_mov_b32 s45, {OF}')
    def finish(base, isA):
        e(f'v_mov_b32 v2, v{base+8}')
        e(f'v_mov_b32 v3, v{base+8}')
        A.nop(2)
        e('v_permlane32_swap_b32 v2, v3')
        A.nop(2)
        if isA:
            e(f'v_add_f32 v3, {f2u(1e-6):#x}, v3')
        e('v_rcp_f32 v3, v3')
        if isA:
            e('v_mov_b32 v2, v232')
        else:
            e('v_sub_f32 v2, 1.0, v232')
        e('v_mul_f32 v3, v3, v2')
        for r in range(12): e(f'v_mul_f32 v{base+r}, v{base+r}, v3')
        for i in range(6): e(f'v_cvt_pk_bf16_f32 v{200+i}, v{base+2*i}, v{base+2*i+1}')
        for a_ in range(3):
            e(f'v_add_u32 v11, {8*a_+(0 if isA else 640)}, v10')
            e('v_lshrrev_b32 v12, 3, v11')
            e('v_lshlrev_b32 v12, 8, v12')
            e('v_bfe_u32 v13, v11, 2, 1')
            e('v_lshl_add_u32 v12, v13, 3, v12')
            e('v_add_u32 v12, v12, v4')
            if a_==2: e('s_mov_b32 exec_hi, 0')
            e(f'buffer_store_dwordx2 v[{200+2*a_}:{201+2*a_}], v12, s[8:11], s45 offen{STF}')
            if a_==2: e('s_mov_b32 exec_hi, -1')
        A.nop(2)
    finish(128,False)
    A.nop(4)
    finish(80,True)
    A.label(f'{name}_fin')
    stamp_end(A,1,4,14)
    A.label(f'{name}_done')
    e('s_endpgm')

def k2_desc(name='k2_kernel'):
    return f'''.amdhsa_kernel {name}
  .amdhsa_next_free_vgpr 256
  .amdhsa_next_free_sgpr 102
  .amdhsa_accum_offset 256
  .amdhsa_group_segment_fixed_size 0
  .amdhsa_kernarg_size 80
  .amdhsa_user_sgpr_count 2
  .amdhsa_user_sgpr_kernarg_segment_ptr 1
  .amdhsa_system_sgpr_workgroup_id_x 1
.end_amdhsa_kernel
'''
K2_LAUNCH=f'; @launch kernel=k2_kernel grid=(256,1,1) block=(512,1,1) lds={K2_LDS}'
```

```python
from asmlib import *
from layout import *

def gen_k3(A, name='k3_kernel'):
    e=A.e
    A.lines.append('.p2align 8')
    A.lines.append(f'.globl {name}')
    A.lines.append(f'.type {name},@function')
    A.label(name)
    e('s_cmp_ge_u32 s2, 256')
    e(f's_cbranch_scc1 {name}_done')
    stamp_start(A)
    e('s_load_dwordx2 s[8:9], s[0:1], 56')
    e('s_load_dwordx2 s[12:13], s[0:1], 72')
    e('s_and_b32 s3, s2, 7')
    e('s_lshr_b32 s14, s2, 3')
    e('s_lshl_b32 s15, s3, 2')
    e('s_lshr_b32 s16, s14, 3')
    e('s_add_u32 s15, s15, s16')
    e('s_and_b32 s16, s14, 7')
    e('v_lshrrev_b32 v2, 6, v0')
    e('v_and_b32 v1, 63, v0')
    e('s_nop 0')
    e('v_readfirstlane_b32 s17, v2')
    e('s_waitcnt lgkmcnt(0)')
    srd(A,24,12,WS_END)
    srd(A,28,8,2048*1280)
    e('v_and_b32 v2, 15, v1')
    e('v_lshrrev_b32 v3, 4, v1')
    e('v_lshlrev_b32 v4, 4, v1')
    e('s_mul_i32 s33, s15, 160')
    e('s_mul_i32 s34, s17, 10')
    e('s_add_u32 s33, s33, s34')
    e('s_lshl_b32 s33, s33, 10')
    e(f's_add_u32 s33, s33, {OF}')
    for mt in range(4):
        e(f's_add_u32 s{36+mt}, s33, {mt*40960}')
    e('s_mul_i32 s40, s16, 40')
    e('s_add_u32 s40, s40, s34')
    e('s_mul_i32 s40, s40, 5120')
    e(f's_add_u32 s40, s40, {WF}')
    NS=6
    def group(ks):
        sl=ks%NS
        base=sl*36
        for t in range(5):
            off=t*1024
            if off<4096:
                e(f'buffer_load_dwordx4 a[{base+t*4}:{base+t*4+3}], v4, s[24:27], s40 offen offset:{off}')
            else:
                e('s_add_u32 s41, s40, 4096')
                e(f'buffer_load_dwordx4 a[{base+t*4}:{base+t*4+3}], v4, s[24:27], s41 offen')
        e('s_add_u32 s40, s40, 5120')
        for mt in range(4):
            q=ks//4
            e(f'buffer_load_dwordx4 a[{base+20+mt*4}:{base+20+mt*4+3}], v4, s[24:27], s{36+mt} offen offset:{(ks%4)*1024}')
        if ks%4==3:
            for mt in range(4): e(f's_add_u32 s{36+mt}, s{36+mt}, 4096')
    for ks in range(NS): group(ks)
    stamp_mid(A,0)
    for ks in range(10):
        issued=min(10,ks+NS)
        e(f's_waitcnt vmcnt({9*(issued-ks-1)})')
        if ks==0: stamp_mid(A,1)
        base=(ks%NS)*36
        for t in range(5):
            for mt in range(4):
                acc=128+(mt*5+t)*4
                cc='0' if ks==0 else f'v[{acc}:{acc+3}]'
                e(f'v_mfma_f32_16x16x32_bf16 v[{acc}:{acc+3}], a[{base+t*4}:{base+t*4+3}], a[{base+20+mt*4}:{base+20+mt*4+3}], {cc}')
        if ks+NS<10: group(ks+NS)
    A.nop(10)
    stamp_mid(A,2)
    e('s_mul_i32 s45, s17, 5120')
    e('v_add_u32 v7, s45, v4')
    e('v_add_u32 v13, 40960, v7')
    for mt in range(4):
        for t in range(5):
            acc=128+(mt*5+t)*4
            off=(mt&1)*20480+t*1024
            e(f'ds_write_b128 v{7 if mt<2 else 13}, v[{acc}:{acc+3}] offset:{off}')
    e('s_waitcnt lgkmcnt(0)')
    e('s_barrier')
    e('s_mul_i32 s45, s17, 20480')
    e('v_add_u32 v7, s45, v4')
    for src in range(4):
        for t in range(5):
            d=32+(src*5+t)*4
            e(f'ds_read_b128 v[{d}:{d+3}], v7 offset:{src*5120+t*1024}')
    e('s_waitcnt lgkmcnt(0)')
    for i in range(20):
        e(f'v_add_f32 v{32+i}, v{32+i}, v{52+i}')
        e(f'v_add_f32 v{72+i}, v{72+i}, v{92+i}')
    for i in range(20):
        e(f'v_add_f32 v{32+i}, v{32+i}, v{72+i}')
    for i in range(10):
        e(f'v_cvt_pk_bf16_f32 v{112+i}, v{32+2*i}, v{33+2*i}')
    e('s_lshl_b32 s32, s15, 6')
    e('s_lshl_b32 s33, s17, 4')
    e('s_add_u32 s32, s32, s33')
    e('v_add_u32 v4, s32, v2')
    e('v_mul_u32_u24 v4, 1280, v4')
    e('v_lshl_add_u32 v4, v3, 3, v4')
    e('s_mul_i32 s35, s16, 160')
    e('v_add_u32 v4, s35, v4')
    for t in range(5):
        e(f'buffer_store_dwordx2 v[{112+2*t}:{113+2*t}], v4, s[28:31], 0 offen offset:{t*32}')
    A.label(f'{name}_fin')
    stamp_end(A,2,12,17)
    A.label(f'{name}_done')
    e('s_endpgm')

def k3_desc(name='k3_kernel'):
    return f'''.amdhsa_kernel {name}
  .amdhsa_next_free_vgpr 472
  .amdhsa_next_free_sgpr 102
  .amdhsa_accum_offset 256
  .amdhsa_group_segment_fixed_size 0
  .amdhsa_kernarg_size 80
  .amdhsa_user_sgpr_count 2
  .amdhsa_user_sgpr_kernarg_segment_ptr 1
  .amdhsa_system_sgpr_workgroup_id_x 1
.end_amdhsa_kernel
'''
K3_LAUNCH='; @launch kernel=k3_kernel grid=(256,1,1) block=(256,1,1) lds=81920'
```

```python
S=2048; D=640; H=32; DH=20
REC=1280
QB =0
KB =QB+32*64*REC
PA =KB+32*64*REC
VB =PA+32*64*REC
PKT=VB+32*64*1280
VAT=PKT+32*64*1280
NRM=VAT+32*64*1280
NRM_SZ=2*160*32*4
GATE=NRM+NRM_SZ
GATE_SZ=2048*4
OF=GATE+GATE_SZ
OF_SZ=128*40*1024
WF=OF+OF_SZ
WF_SZ=8*40*5*1024
WS_END=WF+WF_SZ
import math
QSCALE=(20**-0.5)*math.log2(math.e)
```

```python
from asmlib import *
from layout import *
import struct, os
def f2u(x):
    return struct.unpack('<I', struct.pack('<f', x))[0]
LOG2E=1.4426950408889634
STF=os.environ.get('STFLAGS','')

WSZ=32768
XOFF=131072
def gen_k1(A, name='k1_kernel'):
    e=A.e
    A.lines.append('.p2align 8')
    A.lines.append(f'.globl {name}')
    A.lines.append(f'.type {name},@function')
    A.label(name)
    e('s_cmp_ge_u32 s2, 240')
    e(f's_cbranch_scc1 {name}_done')
    stamp_start(A)
    e('s_load_dwordx4 s[4:7], s[0:1], 0')
    e('s_load_dwordx2 s[8:9], s[0:1], 32')
    e('s_load_dwordx2 s[10:11], s[0:1], 48')
    e('s_load_dwordx2 s[12:13], s[0:1], 72')
    e('s_and_b32 s3, s2, 7')
    e('s_lshr_b32 s19, s2, 3')
    e('s_mul_i32 s3, s3, 30')
    e('s_add_u32 s3, s3, s19')
    e('s_cmp_ge_u32 s3, 120')
    e('s_cselect_b32 s14, 8, 0')
    e('s_cselect_b32 s19, 120, 0')
    e('s_sub_u32 s3, s3, s19')
    e('s_lshr_b32 s15, s3, 3')
    e('s_and_b32 s19, s3, 7')
    e('s_add_u32 s14, s14, s19')
    e('v_lshrrev_b32 v2, 6, v0')
    e('v_and_b32 v1, 63, v0')
    e('s_nop 0')
    e('v_readfirstlane_b32 s18, v2')
    e('s_waitcnt lgkmcnt(0)')
    srd(A,20,4,2048*1280)
    srd(A,24,6,640*3840)
    srd(A,36,8,640*3840)
    srd(A,28,12,WS_END)
    srd(A,32,10,1280)
    e('s_lshr_b32 s16, s18, 2')
    e('s_and_b32 s17, s18, 3')
    e('s_cmp_ge_u32 s15, 5')
    e('s_cselect_b32 s40, 1, 0')
    e('s_cmp_ge_u32 s15, 10')
    e('s_cselect_b32 s40, 2, s40')
    e('s_mul_i32 s41, s40, 5')
    e('s_sub_u32 s41, s15, s41')
    e('s_lshl_b32 s42, s14, 7')
    e('s_lshl_b32 s43, s15, 4')
    e('s_add_u32 s42, s42, s43')
    e('s_lshl_b32 s43, s18, 1')
    e('s_add_u32 s42, s42, s43')
    e('s_mul_i32 s43, s42, 1280')
    e('v_lshlrev_b32 v5, 2, v1')
    e('s_cmp_ge_u32 s18, 8')
    e(f's_cbranch_scc1 {name}_loader')
    e('v_and_b32 v2, 15, v1')
    e('v_lshrrev_b32 v3, 4, v1')
    e('v_lshrrev_b32 v4, 1, v2')
    e('v_xor_b32 v4, v4, v3')
    e('s_lshl_b32 s44, s16, 13')
    e(f's_add_u32 s44, s44, {XOFF}')
    e('v_lshlrev_b32 v6, 7, v2')
    e('v_add_u32 v6, s44, v6')
    e('v_lshl_add_u32 v14, v4, 4, v6')
    e('v_xor_b32 v4, 4, v4')
    e('v_lshl_add_u32 v15, v4, 4, v6')
    e('v_lshrrev_b32 v4, 2, v1')
    e('v_and_b32 v6, 7, v4')
    e('v_lshlrev_b32 v7, 8, v4')
    e('v_and_b32 v8, 3, v1')
    e('v_lshl_add_u32 v7, v8, 3, v7')
    e('s_lshr_b32 s44, s17, 1')
    e('s_lshl_b32 s44, s44, 14')
    e('v_add_u32 v7, s44, v7')
    e('s_and_b32 s44, s17, 1')
    e('s_lshl_b32 s44, s44, 2')
    for tt in range(4):
        e(f's_add_u32 s45, s44, {tt}')
        e('v_xor_b32 v8, s45, v6')
        e(f'v_lshl_add_u32 v{16+tt}, v8, 5, v7')
    e('s_lshr_b32 s49, s17, 1')
    e('s_cmp_eq_u32 s40, 0')
    e(f's_cbranch_scc1 {name}_WX')
    e('s_cmp_eq_u32 s40, 1')
    e('s_cselect_b32 s50, s49, 0')
    e('s_cmp_eq_u32 s50, 1')
    e(f's_cbranch_scc1 {name}_WX')

    XF=lambda mt:20+mt*4
    WFr=lambda s_,tt:36+s_*16+tt*4
    ACC=lambda mt,tt:68-4+ (mt*4+tt)*4 + 0 if False else 64+ (mt*4+tt)*4+4
    ACC=lambda mt,tt:64+(mt*4+tt)*4
    WFr=lambda s_,tt:32+s_*16+tt*4
    XF=lambda mt:16+mt*4 if False else 112
    XF=lambda mt:(0,0,0,0)[mt]
    XF=lambda mt:16+mt*4
    def mainloop(wx):
        EXP=os.environ.get('EXP','')
        e('v_mov_b32 v8, v14'); e('v_mov_b32 v9, v15')
        for i in range(4): e(f'v_mov_b32 v{10+i}, v{16+i}')
        def xread(c,ks2,mt):
            if 'noxr' in EXP and mt>=2: return
            e(f'ds_read_b128 v[{XF(mt)}:{XF(mt)+3}], v{8+ks2} offset:{(c%2)*16384+mt*2048}')
        def wread(c,ks2,s_):
            for tt in range(4):
                if 'nowr' in EXP and tt>=2: continue
                for hf in range(2):
                    e(f'ds_read_b64_tr_b16 v[{WFr(s_,tt)+2*hf}:{WFr(s_,tt)+2*hf+1}], v{10+tt} offset:{(c%2)*WSZ+(ks2*32+hf*16)*256}')
        def sync(c):
            e('s_waitcnt lgkmcnt(0)')
            if STAMP:
                e('s_memtime s[78:79]'); e('s_waitcnt lgkmcnt(0)')
            if 'noload' not in EXP and 'free' not in EXP: e('s_barrier')
            if STAMP:
                e('s_memtime s[80:81]'); e('s_waitcnt lgkmcnt(0)')
                e('s_sub_u32 s80, s80, s78')
                if c==0: e('s_mov_b32 s74, 0')
                else: e('s_add_u32 s74, s74, s80')
                e('s_mov_b32 s75, 0')
            if c>0 and c%2==0:
                d=2*WSZ if (c%4)==2 else -2*WSZ
                for i in range(4): e(f'v_add_u32 v{10+i}, {d}, v{10+i}')
        sync(0)
        stamp_mid(A,0)
        wread(0,0,0)
        for mt in range(4): xread(0,0,mt)
        for st in range(20):
            c=st//2; ks2=st%2; s_=st%2
            nc,nk=(c,1) if ks2==0 else (c+1,0)
            last=(st==19)
            if ks2==1 and not last: sync(c+1)
            if not last: wread(nc,nk,1-s_)
            for mt in range(4):
                e(f's_waitcnt lgkmcnt({11 if not last else 3-mt})')
                for tt in range(4):
                    a_=ACC(mt,tt)
                    cc='0' if st==0 else f'v[{a_}:{a_+3}]'
                    xr=f'v[{XF(mt)}:{XF(mt)+3}]'; wr=f'v[{WFr(s_,tt)}:{WFr(s_,tt)+3}]'
                    if wx: e(f'v_mfma_f32_16x16x32_bf16 v[{a_}:{a_+3}], {wr}, {xr}, {cc}')
                    else:  e(f'v_mfma_f32_16x16x32_bf16 v[{a_}:{a_+3}], {xr}, {wr}, {cc}')
                if not last: xread(nc,nk,mt)
        A.nop(10)
        stamp_mid(A,1)

    def consts():
        e(f's_mov_b32 s52, {f2u(LOG2E):#x}')
        e(f's_mov_b32 s53, {f2u(1e-6):#x}')
        e(f's_mov_b32 s54, {f2u(QSCALE):#x}')
    def phi(regs,tmp):
        for i,r in enumerate(regs): e(f'v_mul_f32 v{tmp+i}, s52, v{r}')
        for i,r in enumerate(regs): e(f'v_min_f32 v{tmp+i}, 0, v{tmp+i}')
        for i,r in enumerate(regs): e(f'v_exp_f32 v{tmp+i}, v{tmp+i}')
        for i,r in enumerate(regs): e(f'v_max_f32 v{r}, 0, v{r}')
        for i,r in enumerate(regs): e(f'v_add_f32 v{r}, v{r}, v{tmp+i}')
        for i,r in enumerate(regs): e(f'v_add_f32 v{r}, s53, v{r}')
    def gate_epilogue():
        lab=A.newlabel('k1ng')
        e('s_waitcnt vmcnt(0)')
        e('s_cmp_ge_u32 s15, 8')
        e(f's_cbranch_scc1 {lab}')
        e('s_mov_b32 s55, 0xffff0000')
        for rr in range(2):
            d=20+rr
            first=True
            for i in range(5):
                g=160+i; x=165+rr*5+i
                e(f'v_lshlrev_b32 v22, 16, v{g}')
                e(f'v_lshlrev_b32 v23, 16, v{x}')
                if first: e(f'v_mul_f32 v{d}, v22, v23')
                else: e(f'v_fmac_f32 v{d}, v22, v23')
                first=False
                e(f'v_and_b32 v22, s55, v{g}')
                e(f'v_and_b32 v23, s55, v{x}')
                e(f'v_fmac_f32 v{d}, v22, v23')
        for sh in (8,4,2,1):
            A.nop(2)
            for rr in range(2):
                d=20+rr
                e(f'v_add_f32_dpp v{d}, v{d}, v{d} row_ror:{sh} row_mask:0xf bank_mask:0xf')
        A.nop(1)
        for rr in range(2):
            for q in range(4):
                e(f'v_readlane_b32 s{56+rr*4+q}, v{20+rr}, {q*16}')
        A.nop(2)
        for rr in range(2):
            d=20+rr
            e(f'v_mov_b32 v{d}, s{56+rr*4}')
            for q in range(1,4):
                e(f'v_add_f32 v{d}, s{56+rr*4+q}, v{d}')
            e(f'v_mul_f32 v{d}, s52, v{d}')
            e(f'v_sub_f32 v{d}, 0, v{d}')
            e(f'v_exp_f32 v{d}, v{d}')
            e('s_nop 0')
            e(f'v_add_f32 v{d}, 1.0, v{d}')
            e(f'v_rcp_f32 v{d}, v{d}')
        e('s_nop 0')
        e('v_cmp_eq_u32 vcc, 1, v1')
        A.nop(2)
        e('v_cndmask_b32 v20, v20, v21, vcc')
        e('v_add_u32 v22, s42, v1')
        e('v_lshlrev_b32 v22, 2, v22')
        e(f's_mov_b32 s55, {GATE}')
        e('s_mov_b64 exec, 3')
        e(f'buffer_store_dword v20, v22, s[28:31], s55 offen{STF}')
        e('s_mov_b64 exec, -1')
        A.label(lab)

    def wx_epi(kind):
        base={'Aq':PA,'Bq':QB,'Bk':KB}[kind]
        allregs=[ACC(mt,tt)+r for mt in range(4) for tt in range(4) for r in range(4)]
        if kind=='Aq':
            for h in range(4): phi(allregs[16*h:16*h+16],32)
        if kind=='Bq':
            for r in allregs: e(f'v_mul_f32 v{r}, s54, v{r}')
        e('s_lshl_b32 s56, s41, 5')
        e('s_and_b32 s57, s17, 1')
        e('s_lshl_b32 s57, s57, 4')
        e('s_add_u32 s56, s56, s57')
        e('v_add_u32 v4, s56, v3')
        e('s_lshl_b32 s57, s14, 2')
        e('s_lshl_b32 s58, s16, 1')
        e('s_add_u32 s57, s57, s58')
        if kind=='Bk':
            e('v_and_b32 v5, 8, v2')
            e('v_lshlrev_b32 v5, 1, v5')
            e('v_and_b32 v6, 7, v2')
            e('v_add_u32 v5, v5, v6')
            dodd=8
        else:
            e('v_mov_b32 v5, v2')
            dodd=16
        e(f's_mov_b32 s59, {base}')
        for tt in range(4):
            e(f'v_add_u32 v6, {4*tt}, v4')
            e('v_mul_u32_u24 v7, 205, v6')
            e('v_lshrrev_b32 v7, 10, v7')
            e('v_mul_u32_u24 v8, 5, v7')
            e('v_sub_u32 v8, v6, v8')
            e('v_lshlrev_b32 v9, 6, v7')
            e('v_add_u32 v9, s57, v9')
            e('v_mul_u32_u24 v9, 1280, v9')
            if kind=='Aq':
                e('v_and_b32 v10, 1, v8')
                e('v_lshrrev_b32 v11, 1, v8')
            else:
                e('v_lshrrev_b32 v10, 1, v8')
                e('v_and_b32 v11, 1, v8')
            e('v_lshlrev_b32 v10, 9, v10')
            e('v_lshl_add_u32 v10, v11, 3, v10')
            e('v_lshl_add_u32 v10, v5, 4, v10')
            e('v_lshlrev_b32 v11, 3, v5')
            e('v_add_u32 v11, 1024, v11')
            e('v_cmp_eq_u32 vcc, 4, v8')
            A.nop(2)
            e('v_cndmask_b32 v12, v10, v11, vcc')
            e(f'v_add_u32 v10, {dodd*16}, v10')
            e(f'v_add_u32 v11, {dodd*8}, v11')
            e('v_cndmask_b32 v13, v10, v11, vcc')
            e('v_add_u32 v12, v12, v9')
            e('v_add_u32 v13, v13, v9')
            for mt in range(4):
                a_=ACC(mt,tt)
                pk=32+(tt*4+mt)*2
                e(f'v_cvt_pk_bf16_f32 v{pk}, v{a_}, v{a_+1}')
                e(f'v_cvt_pk_bf16_f32 v{pk+1}, v{a_+2}, v{a_+3}')
                e(f'buffer_store_dwordx2 v[{pk}:{pk+1}], v{12+(mt&1)}, s[28:31], s59 offen offset:{(mt>>1)*1280}{STF}')
            if kind!='Aq':
                for mt in range(4):
                    a_=ACC(mt,tt)
                    e(f'v_mul_f32 v{14+mt}, v{a_}, v{a_}')
                    for r in range(1,4): e(f'v_fmac_f32 v{14+mt}, v{a_+r}, v{a_+r}')
                e('v_max_f32 v14, v14, v15')
                e('v_max3_f32 v14, v16, v17, v14')
                for sh in (8,4,2,1):
                    A.nop(2)
                    e(f'v_max_f32_dpp v14, v14, v14 row_ror:{sh} row_mask:0xf bank_mask:0xf')
                e('s_lshl_b32 s60, s14, 1')
                e('s_add_u32 s60, s60, s16')
                e('s_lshl_b32 s60, s60, 2')
                e(f's_add_u32 s60, s60, {NRM+(160*32*4 if kind=="Bk" else 0)}')
                e('v_lshlrev_b32 v15, 7, v6')
                e('s_mov_b32 exec_lo, 0x00010001')
                e('s_mov_b32 exec_hi, 0x00010001')
                e(f'buffer_store_dword v14, v15, s[28:31], s60 offen{STF}')
                e('s_mov_b64 exec, -1')
                A.nop(1)

    mainloop(False)
    consts()
    e('v_and_b32 v2, 15, v1')
    e('v_lshrrev_b32 v3, 4, v1')
    e(f's_mov_b32 s59, {PKT}')
    e('s_cmp_eq_u32 s40, 2')
    e(f's_cselect_b32 s59, {VAT}, s59')
    e('s_lshl_b32 s60, s40, 1')
    e('s_add_u32 s60, s60, s49')
    e('s_cmp_eq_u32 s60, 5')
    e(f's_cselect_b32 s59, {VB}, s59')
    lab=A.newlabel('k1nophi')
    e('s_cmp_eq_u32 s40, 1')
    e(f's_cbranch_scc0 {lab}')
    allregs=[ACC(mt,tt)+r for mt in range(4) for tt in range(4) for r in range(4)]
    for h in range(4): phi(allregs[16*h:16*h+16],32)
    A.label(lab)
    e('s_lshl_b32 s56, s41, 7')
    e('s_and_b32 s57, s17, 1')
    e('s_lshl_b32 s57, s57, 6')
    e('s_add_u32 s56, s56, s57')
    e('v_add_u32 v4, s56, v2')
    e('s_lshl_b32 s57, s14, 2')
    e('s_lshl_b32 s58, s16, 1')
    e('s_add_u32 s57, s57, s58')
    e('v_mul_u32_u24 v5, 320, v3')
    for tt in range(4):
        e(f'v_add_u32 v6, {16*tt}, v4')
        e('v_mul_u32_u24 v7, 3277, v6')
        e('v_lshrrev_b32 v7, 16, v7')
        e('v_mul_u32_u24 v8, 20, v7')
        e('v_sub_u32 v8, v6, v8')
        e('v_lshlrev_b32 v9, 6, v7')
        e('v_add_u32 v9, s57, v9')
        e('v_mul_u32_u24 v9, 1280, v9')
        e('v_add_u32 v9, v9, v5')
        e('v_lshl_add_u32 v9, v8, 4, v9')
        for up in range(2):
            pk=32+(tt*2+up)*4
            for a2 in range(2):
                a_=ACC(2*up+a2,tt)
                e(f'v_cvt_pk_bf16_f32 v{pk+2*a2}, v{a_}, v{a_+1}')
                e(f'v_cvt_pk_bf16_f32 v{pk+2*a2+1}, v{a_+2}, v{a_+3}')
            e(f'buffer_store_dwordx4 v[{pk}:{pk+3}], v9, s[28:31], s59 offen offset:{up*1280}{STF}')
        A.nop(1)
    e(f's_branch {name}_fin')

    A.label(f'{name}_WX')
    mainloop(True)
    consts()
    e('v_and_b32 v2, 15, v1')
    e('v_lshrrev_b32 v3, 4, v1')
    e('s_cmp_eq_u32 s40, 1')
    e(f's_cbranch_scc1 {name}_Bk')
    e('s_cmp_eq_u32 s49, 1')
    e(f's_cbranch_scc1 {name}_Bq')
    wx_epi('Aq')
    e(f's_branch {name}_fin')
    A.label(f'{name}_Bq')
    wx_epi('Bq')
    e(f's_branch {name}_fin')
    A.label(f'{name}_Bk')
    wx_epi('Bk')
    e(f's_branch {name}_fin')
    A.label(f'{name}_loader')
    if 'noload' in os.environ.get('EXP',''): e(f's_branch {name}_fin')
    e('s_sub_u32 s44, s18, 8')
    TOUCH=int(os.environ.get('TOUCH','1'))
    e('v_subrev_u32 v7, 512, v0')
    e('v_mov_b32 v118, v0')
    def do_touch():
        e('v_subrev_u32 v119, 512, v118')
        e('v_lshlrev_b32 v117, 7, v119')
        e('s_mul_i32 s50, s2, 10240')
        e('s_mul_i32 s51, s2, 11264')
        e('v_mov_b32 v116, 0x7ffffff0')
        e('v_cmp_gt_u32 vcc, 80, v119')
        A.nop(2)
        e('v_cndmask_b32 v118, v116, v117, vcc')
        e('buffer_load_dword v126, v118, s[24:27], s50 offen')
        e('buffer_load_dword v126, v118, s[36:39], s50 offen')
        e('v_cmp_gt_u32 vcc, 88, v119')
        A.nop(2)
        e('v_cndmask_b32 v118, v116, v117, vcc')
        e('buffer_load_dword v127, v118, s[20:23], s51 offen')
    if TOUCH==1:
        do_touch(); log0=1
    e('v_lshrrev_b32 v6, 4, v1')
    e('v_and_b32 v7, 15, v1')
    e('s_lshr_b32 s45, s44, 2')
    e('s_lshl_b32 s45, s45, 5')
    e('s_and_b32 s46, s44, 1')
    e('s_lshl_b32 s46, s46, 4')
    e('s_add_u32 s45, s45, s46')
    e('s_bfe_u32 s46, s44, 0x10001')
    e('s_lshl_b32 s46, s46, 2')
    e('s_add_u32 s45, s45, s46')
    e('s_lshl_b32 s46, s15, 8')
    e('v_add_u32 v8, s45, v6')
    e('v_mul_u32_u24 v8, 3840, v8')
    e('v_add_u32 v8, s46, v8')
    e('v_lshlrev_b32 v9, 1, v6')
    e('v_xor_b32 v9, v9, v7')
    e('v_lshl_add_u32 v120, v9, 4, v8')
    e('v_xor_b32 v9, 8, v9')
    e('v_lshl_add_u32 v121, v9, 4, v8')
    e('v_lshrrev_b32 v6, 3, v1')
    e('v_and_b32 v7, 7, v1')
    e('s_lshl_b32 s45, s14, 7')
    e('s_lshl_b32 s46, s44, 4')
    e('s_add_u32 s45, s45, s46')
    e('v_add_u32 v8, s45, v6')
    e('v_mul_u32_u24 v8, 1280, v8')
    e('v_lshl_add_u32 v122, v7, 4, v8')
    e('v_lshrrev_b32 v9, 1, v6')
    e('v_xor_b32 v9, v9, v7')
    e('s_lshl_b32 s46, s44, 11')
    e(f's_add_u32 s46, s46, {XOFF}')
    e('v_lshlrev_b32 v8, 7, v6')
    e('v_add_u32 v8, s46, v8')
    e('v_lshl_add_u32 v123, v9, 4, v8')
    e('v_xor_b32 v9, 4, v9')
    e('v_lshl_add_u32 v124, v9, 4, v8')
    e('s_lshl_b32 s46, s44, 11')
    e('s_mov_b32 s60, 0'); e('s_mov_b32 s61, 10240')
    e('v_mov_b32 v125, v1')
    XS=lambda c,i:(c*2+i)*4
    log=[]
    def Lw(c):
        for m,sr in enumerate((24,36)):
            for i in range(2):
                e(f's_mov_b32 s47, {c*245760+i*30720}')
                e(f's_add_u32 m0, s46, {(c%4)*WSZ+m*16384+i*1024}')
                e('s_nop 0')
                e(f'buffer_load_dwordx4 v{120+i}, s[{sr}:{sr+3}], s47 offen lds'); log.append(('W',c))
    def Lx(c):
        for i in range(2):
            e(f'buffer_load_dwordx4 v[{XS(c,i)}:{XS(c,i)+3}], v122, s[20:23], s{60+i} offen offset:{c*128}'); log.append(('x',c))
    def Lsync(c):
        last=max(i for i,t in enumerate(log) if t in (('x',c),('W',c)))
        if STAMP:
            e('s_memtime s[78:79]'); e('s_waitcnt lgkmcnt(0)')
        e(f's_waitcnt vmcnt({len(log)-1-last})')
        if STAMP:
            e('s_memtime s[80:81]'); e('s_waitcnt lgkmcnt(0)')
            e('s_sub_u32 s82, s80, s78')
            if c==0: e('s_mov_b32 s74, 0')
            else: e('s_add_u32 s74, s74, s82')
        for i in range(2):
            e(f'ds_write_b128 v{123+i}, v[{XS(c,i)}:{XS(c,i)+3}] offset:{(c%2)*16384+i*1024}')
        e('s_waitcnt lgkmcnt(0)')
        if STAMP:
            e('s_memtime s[78:79]'); e('s_waitcnt lgkmcnt(0)')
        if 'free' not in os.environ.get('EXP',''): e('s_barrier')
        if STAMP:
            e('s_memtime s[80:81]'); e('s_waitcnt lgkmcnt(0)')
            e('s_sub_u32 s82, s80, s78')
            if c==0: e('s_mov_b32 s76, 0')
            else: e('s_add_u32 s76, s76, s82')
            e('s_mov_b32 s75, 0'); e('s_mov_b32 s77, 0')
    sched={-1:[('x',0),('W',0),('x',1),('W',1),('x',2),('W',2)],0:[('x',3),('W',3),('x',4),('x',5)],1:[('W',4),('x',6),('x',7)],2:[('W',5),('x',8),('x',9)],3:[('W',6)],4:[('W',7)],5:[('W',8)],6:[('W',9)]}
    for c in range(-1,10):
        if c>=0: Lsync(c)
        for k_,c_ in sched.get(c,[]):
            (Lw if k_=='W' else Lx)(c_)
            if TOUCH==2 and (k_,c_)==('W',1):
                do_touch()
                log.extend([('t',0)]*3)
    e('s_cmp_ge_u32 s15, 8')
    e(f's_cbranch_scc1 {name}_fin')
    e('s_lshl_b32 s42, s14, 7')
    e('s_lshl_b32 s43, s15, 4')
    e('s_add_u32 s42, s42, s43')
    e('s_lshl_b32 s43, s44, 1')
    e('s_add_u32 s42, s42, s43')
    e('s_mul_i32 s43, s42, 1280')
    e('v_lshlrev_b32 v5, 2, v125')
    for i in range(5):
        e(f'buffer_load_dword v{100+i}, v5, s[32:35], 0 offen offset:{i*256}')
    for rr in range(2):
        for i in range(5):
            e(f'buffer_load_dword v{105+rr*5+i}, v5, s[20:23], s43 offen offset:{rr*1280+i*256}')
    e('s_waitcnt vmcnt(0)')
    e('s_mov_b32 s55, 0xffff0000')
    for rr in range(2):
        d=20+rr
        first=True
        for i in range(5):
            g=100+i; x=105+rr*5+i
            e(f'v_lshlrev_b32 v30, 16, v{g}')
            e(f'v_lshlrev_b32 v31, 16, v{x}')
            if first: e(f'v_mul_f32 v{d}, v30, v31')
            else: e(f'v_fmac_f32 v{d}, v30, v31')
            first=False
            e(f'v_and_b32 v30, s55, v{g}')
            e(f'v_and_b32 v31, s55, v{x}')
            e(f'v_fmac_f32 v{d}, v30, v31')
    for sh in (8,4,2,1):
        A.nop(2)
        for rr in range(2):
            d=20+rr
            e(f'v_add_f32_dpp v{d}, v{d}, v{d} row_ror:{sh} row_mask:0xf bank_mask:0xf')
    A.nop(1)
    for rr in range(2):
        for q in range(4):
            e(f'v_readlane_b32 s{46+rr*4+q}, v{20+rr}, {q*16}')
    A.nop(2)
    for rr in range(2):
        d=20+rr
        e(f'v_mov_b32 v{d}, s{46+rr*4}')
        for q in range(1,4):
            e(f'v_add_f32 v{d}, s{46+rr*4+q}, v{d}')
    e('v_cmp_eq_u32 vcc, 1, v125')
    A.nop(2)
    e('v_cndmask_b32 v20, v20, v21, vcc')
    e(f's_mov_b32 s52, {f2u(LOG2E):#x}')
    e('v_mul_f32 v20, s52, v20')
    e('v_sub_f32 v20, 0, v20')
    e('v_exp_f32 v20, v20')
    e('s_nop 0')
    e('v_add_f32 v20, 1.0, v20')
    e('v_rcp_f32 v20, v20')
    e('v_add_u32 v22, s42, v125')
    e('v_lshlrev_b32 v22, 2, v22')
    e(f's_mov_b32 s55, {GATE}')
    e('s_mov_b64 exec, 3')
    e(f'buffer_store_dword v20, v22, s[28:31], s55 offen{STF}')
    e('s_mov_b64 exec, -1')
    A.label(f'{name}_fin')
    stamp_end(A,0,12,18)
    A.label(f'{name}_done')
    e('s_endpgm')

def k1_desc(name='k1_kernel'):
    return f'''.amdhsa_kernel {name}
  .amdhsa_next_free_vgpr 128
  .amdhsa_next_free_sgpr 102
  .amdhsa_accum_offset 128
  .amdhsa_group_segment_fixed_size 0
  .amdhsa_kernarg_size 80
  .amdhsa_user_sgpr_count 2
  .amdhsa_user_sgpr_kernarg_segment_ptr 1
  .amdhsa_system_sgpr_workgroup_id_x 1
.end_amdhsa_kernel
'''
K1_LAUNCH='; @launch kernel=k1_kernel grid=(240,1,1) block=(1024,1,1) lds=163840'
```

```python
from asmlib import *
from layout import *
import struct, os
def f2u(x):
    return struct.unpack('<I', struct.pack('<f', x))[0]
STF=os.environ.get('STFLAGS','')
LDS_MAX=0
LDS_KV=8192
LDS_RED=32768
K2_LDS=LDS_RED+98304
THRESH=48.0
EXP=os.environ.get('EXP2','')
PF=int(os.environ.get('PF','0'))

def gen_k2(A, name='k2_kernel'):
    e=A.e
    A.lines.append('.p2align 8')
    A.lines.append(f'.globl {name}')
    A.lines.append(f'.type {name},@function')
    A.label(name)
    e('s_cmp_ge_u32 s2, 256')
    e(f's_cbranch_scc1 {name}_done')
    stamp_start(A)
    e('s_load_dwordx2 s[4:5], s[0:1], 72')
    e('s_and_b32 s3, s2, 7')
    e('s_lshr_b32 s6, s2, 3')
    e('s_lshl_b32 s12, s3, 2')
    e('s_lshr_b32 s7, s6, 3')
    e('s_add_u32 s12, s12, s7')
    e('s_and_b32 s13, s6, 7')
    e('v_lshrrev_b32 v2, 6, v0')
    e('v_and_b32 v1, 63, v0')
    e('s_nop 0')
    e('v_readfirstlane_b32 s14, v2')
    e('s_waitcnt lgkmcnt(0)')
    srd(A,8,4,WS_END)
    e('s_and_b32 s15, s14, 1')
    e('s_lshr_b32 s16, s14, 1')
    Q1=lambda qi:16+qi*4
    Q2=lambda qi:32+qi*4
    KF1=lambda b:48+16*b
    KF2=lambda b:52+16*b
    VF1=lambda b:56+16*b
    VF2=lambda b:60+16*b
    SB=lambda b:80+16*b
    PB=lambda b:112+8*b
    OA=lambda qi:128+16*qi
    KVA=192
    PKF=lambda b:208+4*b
    VAF=lambda b:216+4*b
    e('s_mov_b32 s18, 0x000fffff')
    e('s_mov_b32 s19, 0x000fffff')
    for qi in range(4):
        for r in range(4): e(f'v_mov_b32 v{Q2(qi)+r}, 0')
    e('v_lshlrev_b32 v5, 4, v1')
    e('v_lshlrev_b32 v6, 3, v1')
    e('v_and_b32 v7, 31, v1')
    e('v_lshrrev_b32 v8, 5, v1')
    e('v_mul_u32_u24 v9, 320, v8')
    e('v_lshl_add_u32 v9, v7, 4, v9')
    e('v_cmp_gt_u32 vcc, 32, v1')
    e('v_mov_b32 v10, 0x3f803f80')
    A.nop(2)
    e('v_cndmask_b32 v11, 0, v10, vcc')
    e('v_cmp_eq_u32 vcc, 20, v7')
    A.nop(2)
    e('v_cndmask_b32 v12, 0, v10, vcc')
    for b in range(2):
        e(f'v_mov_b32 v{KF2(b)}, 0'); e(f'v_mov_b32 v{KF2(b)+1}, 0')
        e(f'v_mov_b32 v{KF2(b)+2}, v11'); e(f'v_mov_b32 v{KF2(b)+3}, 0')
        for r in range(4):
            e(f'v_mov_b32 v{VF1(b)+r}, v12'); e(f'v_mov_b32 v{VF2(b)+r}, v12')
            e(f'v_mov_b32 v{PKF(b)+r}, 0'); e(f'v_mov_b32 v{VAF(b)+r}, v12')
    e('s_lshl_b32 s22, s12, 6')
    e('s_lshl_b32 s23, s13, 3')
    e('s_add_u32 s22, s22, s23')
    e('s_lshl_b32 s23, s15, 2')
    e('s_add_u32 s23, s22, s23')
    e('s_mul_i32 s24, s23, 1280')
    e(f's_add_u32 s24, s24, {QB}')
    for qi in range(4):
        e(f'buffer_load_dwordx4 v[{Q1(qi)}:{Q1(qi)+3}], v5, s[8:11], s24 offen offset:{qi*1280}')
    e('s_mov_b32 exec_hi, 0')
    e('s_add_u32 s25, s24, 1024')
    for qi in range(4):
        e(f'buffer_load_dwordx2 v[{Q2(qi)}:{Q2(qi)+1}], v6, s[8:11], s25 offen offset:{qi*1280}')
    e('s_mov_b32 exec_hi, -1')
    e('v_mul_u32_u24 v13, 160*128, v8')
    e('v_lshl_add_u32 v13, v7, 2, v13')
    e('s_mul_i32 s26, s12, 640')
    e(f's_add_u32 s26, s26, {NRM}')
    for g in range(5):
        e(f'buffer_load_dword v{236+g}, v13, s[8:11], s26 offen offset:{g*128}')
    e('s_add_u32 s28, s23, s16')
    e('s_mul_i32 s29, s28, 1280')
    e(f's_add_u32 s29, s29, {PA}')
    e('buffer_load_dwordx4 v[224:227], v5, s[8:11], s29 offen')
    for r in range(4): e(f'v_mov_b32 v{228+r}, 0')
    e('s_mov_b32 exec_hi, 0')
    e('buffer_load_dwordx2 v[228:229], v6, s[8:11], s29 offen offset:1024')
    e('s_mov_b32 exec_hi, -1')
    e('s_lshl_b32 s30, s15, 2')
    e('s_add_u32 s30, s30, s16')
    e('s_lshl_b32 s30, s30, 5')
    e('s_lshl_b32 s31, s13, 8')
    e('s_add_u32 s30, s30, s31')
    e('v_add_u32 v233, s30, v7')
    e('v_lshlrev_b32 v234, 2, v233')
    e(f's_mov_b32 s31, {GATE}')
    e('buffer_load_dword v232, v234, s[8:11], s31 offen')
    e('s_lshl_b32 s32, s12, 6')
    e('s_lshl_b32 s33, s16, 4')
    e('s_add_u32 s32, s32, s33')
    e('s_mul_i32 s36, s32, 1280')
    e(f's_add_u32 s34, s36, {KB}')
    e(f's_add_u32 s36, s36, {VB}')
    e('s_mov_b32 s40, s34')
    e('s_lshl_b32 s32, s12, 6')
    e('s_lshl_b32 s33, s14, 3')
    e('s_add_u32 s32, s32, s33')
    e('s_mul_i32 s37, s32, 1280')
    e(f's_add_u32 s38, s37, {VAT}')
    e(f's_add_u32 s37, s37, {PKT}')
    def loadK(b):
        e(f'buffer_load_dwordx4 v[{KF1(b)}:{KF1(b)+3}], v5, s[8:11], s34 offen')
        e('s_mov_b32 exec_hi, 0')
        e(f'buffer_load_dwordx2 v[{KF2(b)}:{KF2(b)+1}], v6, s[8:11], s34 offen offset:1024')
        e('s_mov_b32 exec_hi, -1')
        e('s_add_u32 s34, s34, 1280')
    def loadV(b):
        e('s_mov_b64 exec, s[18:19]')
        e(f'buffer_load_dwordx4 v[{VF1(b)}:{VF1(b)+3}], v9, s[8:11], s36 offen')
        e(f'buffer_load_dwordx4 v[{VF2(b)}:{VF2(b)+3}], v9, s[8:11], s36 offen offset:640')
        e('s_mov_b64 exec, -1')
        e('s_add_u32 s36, s36, 1280')
    def loadA(b):
        e('s_mov_b64 exec, s[18:19]')
        e(f'buffer_load_dwordx4 v[{PKF(b)}:{PKF(b)+3}], v9, s[8:11], s37 offen')
        e(f'buffer_load_dwordx4 v[{VAF(b)}:{VAF(b)+3}], v9, s[8:11], s38 offen')
        e('s_mov_b64 exec, -1')
        e('s_add_u32 s37, s37, 640')
        e('s_add_u32 s38, s38, 640')
    loadK(0)
    loadV(0)
    loadA(0)
    if PF:
        e('s_mul_i32 s20, s12, 64*1280')
        e('s_mul_i32 s21, s14, 80*128')
        e('s_add_u32 s20, s20, s21')
        e('v_lshlrev_b32 v13, 7, v1')
        for reg,base in enumerate((KB,VB,PKT,VAT)):
            e(f's_add_u32 s21, s20, {base}')
            e(f'buffer_load_dword v{252+reg}, v13, s[8:11], s21 offen')
            e('s_add_u32 s21, s21, 8192')
            e('s_mov_b64 exec, 0xffff')
            e(f'buffer_load_dword v{252+reg}, v13, s[8:11], s21 offen')
            e('s_mov_b64 exec, -1')
    for i in range(64): e(f'v_mov_b32 v{128+i}, 0')
    for i in range(16): e(f'v_mov_b32 v{KVA+i}, 0')
    stamp_mid(A,0)
    e('s_waitcnt vmcnt(0)')
    stamp_mid(A,1)
    for sh in (8,4,2,1):
        A.nop(2)
        for g in range(5):
            e(f'v_max_f32_dpp v{236+g}, v{236+g}, v{236+g} row_ror:{sh} row_mask:0xf bank_mask:0xf')
    A.nop(1)
    for g in range(5):
        for q in range(4):
            e(f'v_readlane_b32 s{44+g*4+q}, v{236+g}, {q*16}')
    A.nop(3)
    for g in range(5):
        e(f's_max_u32 s{44+g*4}, s{44+g*4}, s{44+g*4+1}')
        e(f's_max_u32 s{44+g*4+2}, s{44+g*4+2}, s{44+g*4+3}')
    e('v_mov_b32 v14, s44')
    e('v_mov_b32 v15, s46')
    for g in range(1,5):
        e(f'v_add_f32 v14, s{44+g*4}, v14')
        e(f'v_add_f32 v15, s{44+g*4+2}, v15')
    e('v_mul_f32 v14, v14, v15')
    e('v_sqrt_f32 v14, v14')
    e('s_nop 0')
    e(f'v_mul_f32 v14, {f2u(1.02):#x}, v14')
    e('s_nop 0')
    e('v_readfirstlane_b32 s42, v14')
    A.nop(3)
    for qi in range(4): e(f'v_mov_b32 v{236+qi}, v14')
    e(f's_cmp_gt_u32 s42, {f2u(THRESH):#x}')
    e(f's_cbranch_scc0 {name}_main')
    for qi in range(4): e(f'v_mov_b32 v{236+qi}, 0xff800000')
    e('s_mov_b32 s34, s40')
    e('s_mov_b32 s43, 0')
    A.label(f'{name}_fb')
    loadK(1)
    e('s_waitcnt vmcnt(0)')
    for qi in range(4):
        e(f'v_mfma_f32_32x32x16_bf16 v[{SB(0)}:{SB(0)+15}], v[{KF1(1)}:{KF1(1)+3}], v[{Q1(qi)}:{Q1(qi)+3}], 0')
        e(f'v_mfma_f32_32x32x16_bf16 v[{SB(0)}:{SB(0)+15}], v[{KF2(1)}:{KF2(1)+3}], v[{Q2(qi)}:{Q2(qi)+3}], v[{SB(0)}:{SB(0)+15}]')
        A.nop(14)
        for i in range(8):
            e(f'v_max3_f32 v{236+qi}, v{SB(0)+2*i}, v{SB(0)+2*i+1}, v{236+qi}')
        A.nop(2)
    e('s_add_u32 s43, s43, 1')
    e('s_cmp_lt_u32 s43, 16')
    e(f's_cbranch_scc1 {name}_fb')
    for qi in range(4):
        e(f'v_mov_b32 v2, v{236+qi}')
        e(f'v_mov_b32 v3, v{236+qi}')
        A.nop(2)
        e('v_permlane32_swap_b32 v2, v3')
        A.nop(2)
        e(f'v_max_f32 v{236+qi}, v2, v3')
    e('s_lshl_b32 s44, s14, 10')
    e('v_lshlrev_b32 v2, 2, v1')
    e('v_add_u32 v3, s44, v2')
    for qi in range(4):
        e(f'ds_write_b32 v3, v{236+qi} offset:{LDS_MAX+qi*256}')
    e('s_waitcnt lgkmcnt(0)')
    e('s_barrier')
    e('s_lshl_b32 s44, s15, 10')
    e('v_add_u32 v3, s44, v2')
    for qi in range(4):
        for kc in range(4):
            e(f'ds_read_b32 v{240+kc}, v3 offset:{LDS_MAX+kc*2048+qi*256}')
        e('s_waitcnt lgkmcnt(0)')
        e(f'v_max3_f32 v{236+qi}, v240, v241, v242')
        e(f'v_max_f32 v{236+qi}, v{236+qi}, v243')
    e('s_mov_b32 s34, s40')
    loadK(0)
    e('s_waitcnt vmcnt(0)')
    A.label(f'{name}_main')
    e('s_mov_b32 exec_hi, 0')
    for qi in range(4):
        e(f'v_sub_f32 v2, 0, v{236+qi}')
        e('v_cvt_pk_bf16_f32 v3, v2, v2')
        e('v_lshlrev_b32 v3, 16, v3')
        e('v_sub_f32 v4, v2, v3')
        e(f'v_cvt_pk_bf16_f32 v{Q2(qi)+2}, v2, v4')
    e('s_mov_b32 exec_hi, -1')
    A.nop(2)
    def mf(d,a_,b_,c_):
        cc='0' if c_ is None else f'v[{c_}:{c_+15}]'
        e(f'v_mfma_f32_32x32x16_bf16 v[{d}:{d+15}], v[{a_}:{a_+3}], v[{b_}:{b_+3}], {cc}')
    mf(SB(0),KF1(0),Q1(0),None)
    mf(SB(0),KF2(0),Q2(0),SB(0))
    A.nop(16)
    e('s_mov_b32 s43, 0')
    for r in range(8): e(f'v_mov_b32 v{PB(1)+r}, 0')
    A.nop(2)
    stamp_mid(A,2)
    A.label(f'{name}_loop')
    def grp(sb,g):
        for i in range(4): e(f'v_exp_f32 v{sb+4*g+i}, v{sb+4*g+i}')
    def cv(sb,pb,g):
        e(f'v_cvt_pk_bf16_f32 v{pb+2*g}, v{sb+4*g}, v{sb+4*g+1}')
        e(f'v_cvt_pk_bf16_f32 v{pb+2*g+1}, v{sb+4*g+2}, v{sb+4*g+3}')
    for tb in range(2):
        for qi in range(4):
            n=tb*4+qi
            cur=SB(n%2); nx=SB((n+1)%2); P=PB(n%2); Pp=PB((n+1)%2)
            nb = tb if qi<3 else 1-tb
            nq=(qi+1)%4
            pq=(qi-1)%4; pbuf= tb if qi>0 else 1-tb
            if qi==3: e('s_waitcnt vmcnt(4)')
            mf(nx,KF1(nb),Q1(nq),None)
            if qi==0 and 'noK' not in EXP: loadK(1-tb)
            grp(cur,0); cv(cur,P,0)
            mf(nx,KF2(nb),Q2(nq),nx)
            grp(cur,1); cv(cur,P,1)
            mf(OA(pq),VF2(pbuf),Pp+4,OA(pq))
            if qi==1:
                e('s_waitcnt vmcnt(2)')
                if 'noA' not in EXP: mf(KVA,PKF(tb),VAF(tb),KVA)
                if 'noV' not in EXP: loadV(1-tb)
            if qi==2 and 'noA' not in EXP: loadA(1-tb)
            grp(cur,2); cv(cur,P,2)
            if qi==0: e('s_waitcnt vmcnt(4)')
            mf(OA(qi),VF1(tb),P,OA(qi))
            grp(cur,3); cv(cur,P,3)
    e('s_add_u32 s43, s43, 1')
    e('s_cmp_lt_u32 s43, 8')
    e(f's_cbranch_scc1 {name}_loop')
    A.nop(2)
    mf(OA(3),VF2(1),PB(1)+4,OA(3))
    A.nop(16)
    stamp_mid(A,3)
    e('s_waitcnt vmcnt(0)')
    e('s_load_dwordx2 s[48:49], s[0:1], 16')
    e('s_load_dwordx2 s[50:51], s[0:1], 40')
    e('s_waitcnt lgkmcnt(0)')
    e('s_lshl_b32 s52, s2, 3')
    e('s_add_u32 s52, s52, s14')
    e('s_mul_i32 s53, s52, 5243')
    e('s_lshr_b32 s53, s53, 20')
    e('s_mul_i32 s54, s53, 200')
    e('s_sub_u32 s54, s52, s54')
    e('s_mul_i32 s55, s54, 52429')
    e('s_lshr_b32 s55, s55, 18')
    e('s_mul_i32 s56, s55, 5')
    e('s_sub_u32 s56, s54, s56')
    e('s_cmp_lt_u32 s55, 20')
    e('s_cselect_b32 s58, s48, s50')
    e('s_cselect_b32 s59, s49, s51')
    e('s_cselect_b32 s57, 0, 20')
    e('s_sub_u32 s57, s55, s57')
    srd(A,60,58,640*1280)
    e('v_and_b32 v2, 15, v1')
    e('v_lshrrev_b32 v3, 4, v1')
    e('s_lshl_b32 s57, s57, 5')
    e('v_lshlrev_b32 v4, 3, v3')
    e('v_add_u32 v4, s57, v4')
    e('v_mul_u32_u24 v4, 1280, v4')
    e('s_mul_i32 s64, s53, 160')
    e('s_lshl_b32 s65, s56, 5')
    e('s_add_u32 s64, s64, s65')
    e('v_lshl_add_u32 v4, v2, 1, v4')
    e('v_add_u32 v4, s64, v4')
    labw=A.newlabel('k2now')
    e('s_cmp_ge_u32 s52, 1600')
    e(f's_cbranch_scc1 {labw}')
    for j in range(8):
        off=j*1280
        if off<4096:
            e(f'buffer_load_ushort v{244+j}, v4, s[60:63], 0 offen offset:{off}')
        else:
            e(f's_mov_b32 s65, {off}')
            e(f'buffer_load_ushort v{244+j}, v4, s[60:63], s65 offen')
    A.label(labw)
    for qi in range(4):
        e('s_lshl_b32 s44, s15, 2')
        e('s_add_u32 s44, s44, s16')
        e(f's_add_u32 s44, s44, {qi*8}')
        e('s_mul_i32 s44, s44, 3072')
        e(f's_add_u32 s44, s44, {LDS_RED}')
        e('v_add_u32 v2, s44, v5')
        for q in range(3):
            e(f'ds_write_b128 v2, v[{OA(qi)+4*q}:{OA(qi)+4*q+3}] offset:{q*1024}')
    e('s_mul_i32 s44, s14, 3072')
    e('v_add_u32 v2, s44, v5')
    for q in range(3):
        e(f'ds_write_b128 v2, v[{KVA+4*q}:{KVA+4*q+3}] offset:{LDS_KV+q*1024}')
    e('s_waitcnt lgkmcnt(0)')
    e('s_barrier')
    e('s_mul_i32 s44, s14, 12288')
    e(f's_add_u32 s44, s44, {LDS_RED}')
    e('v_add_u32 v2, s44, v5')
    for src in range(4):
        for q in range(3):
            e(f'ds_read_b128 v[{128+src*12+q*4}:{128+src*12+q*4+3}], v2 offset:{src*3072+q*1024}')
    for src in range(8):
        for q in range(3):
            e(f'ds_read_b128 v[{16+src*12+q*4}:{16+src*12+q*4+3}], v5 offset:{LDS_KV+src*3072+q*1024}')
    e('s_waitcnt lgkmcnt(0)')
    for st in (4,2,1):
        for src in range(st):
            for r in range(12):
                e(f'v_add_f32 v{16+src*12+r}, v{16+src*12+r}, v{16+(src+st)*12+r}')
    for i in range(6): e(f'v_cvt_pk_bf16_f32 v{48+i}, v{16+2*i}, v{17+2*i}')
    e('v_mov_b32 v54, 0'); e('v_mov_b32 v55, 0')
    A.nop(2)
    mf(80,48,224,None)
    mf(80,52,228,80)
    for r in range(12):
        e(f'v_add_f32 v{128+r}, v{128+r}, v{140+r}')
        e(f'v_add_f32 v{152+r}, v{152+r}, v{164+r}')
    for r in range(12):
        e(f'v_add_f32 v{128+r}, v{128+r}, v{152+r}')
    e('v_lshrrev_b32 v4, 4, v233')
    e('v_mul_u32_u24 v4, 40*1024, v4')
    e('v_and_b32 v10, 15, v233')
    e('v_lshl_add_u32 v4, v10, 4, v4')
    e('s_mul_i32 s44, s12, 20')
    e('v_lshlrev_b32 v10, 2, v8')
    e('v_add_u32 v10, s44, v10')
    e(f's_mov_b32 s45, {OF}')
    def finish(base, isA):
        e(f'v_mov_b32 v2, v{base+8}')
        e(f'v_mov_b32 v3, v{base+8}')
        A.nop(2)
        e('v_permlane32_swap_b32 v2, v3')
        A.nop(2)
        if isA:
            e(f'v_add_f32 v3, {f2u(1e-6):#x}, v3')
        e('v_rcp_f32 v3, v3')
        if isA:
            e('v_mov_b32 v2, v232')
        else:
            e('v_sub_f32 v2, 1.0, v232')
        e('v_mul_f32 v3, v3, v2')
        for r in range(12): e(f'v_mul_f32 v{base+r}, v{base+r}, v3')
        for i in range(6): e(f'v_cvt_pk_bf16_f32 v{200+i}, v{base+2*i}, v{base+2*i+1}')
        for a_ in range(3):
            e(f'v_add_u32 v11, {8*a_+(0 if isA else 640)}, v10')
            e('v_lshrrev_b32 v12, 3, v11')
            e('v_lshlrev_b32 v12, 8, v12')
            e('v_bfe_u32 v13, v11, 2, 1')
            e('v_lshl_add_u32 v12, v13, 3, v12')
            e('v_add_u32 v12, v12, v4')
            if a_==2: e('s_mov_b32 exec_hi, 0')
            e(f'buffer_store_dwordx2 v[{200+2*a_}:{201+2*a_}], v12, s[8:11], s45 offen{STF}')
            if a_==2: e('s_mov_b32 exec_hi, -1')
        A.nop(2)
    finish(128,False)
    A.nop(4)
    finish(80,True)
    e('v_lshlrev_b32 v5, 4, v1')
    e('s_waitcnt vmcnt(6)')
    labw2=A.newlabel('k2now')
    e('s_cmp_ge_u32 s52, 1600')
    e(f's_cbranch_scc1 {labw2}')
    e('s_lshl_b32 s53, s52, 10')
    e(f's_add_u32 s53, s53, {WF}')
    for j in range(4):
        e(f'v_lshl_or_b32 v{244+j}, v{245+2*j}, 16, v{244+2*j}')
    e(f'buffer_store_dwordx4 v[244:247], v5, s[8:11], s53 offen{STF}')
    A.label(labw2)
    A.label(f'{name}_fin')
    stamp_end(A,1,4,14)
    A.label(f'{name}_done')
    e('s_endpgm')

def k2_desc(name='k2_kernel'):
    return f'''.amdhsa_kernel {name}
  .amdhsa_next_free_vgpr 256
  .amdhsa_next_free_sgpr 102
  .amdhsa_accum_offset 256
  .amdhsa_group_segment_fixed_size 0
  .amdhsa_kernarg_size 80
  .amdhsa_user_sgpr_count 2
  .amdhsa_user_sgpr_kernarg_segment_ptr 1
  .amdhsa_system_sgpr_workgroup_id_x 1
.end_amdhsa_kernel
'''
K2_LAUNCH=f'; @launch kernel=k2_kernel grid=(256,1,1) block=(512,1,1) lds={K2_LDS}'
```

```python
from asmlib import *
from layout import *
import struct, os
def f2u(x):
    return struct.unpack('<I', struct.pack('<f', x))[0]
LOG2E=1.4426950408889634
STF=os.environ.get('STFLAGS','')

WSZ=32768
XOFF=131072
def gen_k1(A, name='k1_kernel'):
    e=A.e
    A.lines.append('.p2align 8')
    A.lines.append(f'.globl {name}')
    A.lines.append(f'.type {name},@function')
    A.label(name)
    e('s_cmp_ge_u32 s2, 240')
    e(f's_cbranch_scc1 {name}_done')
    stamp_start(A)
    e('s_load_dwordx4 s[4:7], s[0:1], 0')
    e('s_load_dwordx2 s[8:9], s[0:1], 32')
    e('s_load_dwordx2 s[10:11], s[0:1], 48')
    e('s_load_dwordx2 s[12:13], s[0:1], 72')
    e('s_and_b32 s3, s2, 7')
    e('s_lshr_b32 s19, s2, 3')
    e('s_mul_i32 s3, s3, 30')
    e('s_add_u32 s3, s3, s19')
    e('s_cmp_ge_u32 s3, 120')
    e('s_cselect_b32 s14, 8, 0')
    e('s_cselect_b32 s19, 120, 0')
    e('s_sub_u32 s3, s3, s19')
    e('s_lshr_b32 s15, s3, 3')
    e('s_and_b32 s19, s3, 7')
    e('s_add_u32 s14, s14, s19')
    e('v_lshrrev_b32 v2, 6, v0')
    e('v_and_b32 v1, 63, v0')
    e('s_nop 0')
    e('v_readfirstlane_b32 s18, v2')
    e('s_waitcnt lgkmcnt(0)')
    srd(A,20,4,2048*1280)
    srd(A,24,6,640*3840)
    srd(A,36,8,640*3840)
    srd(A,28,12,WS_END)
    srd(A,32,10,1280)
    e('s_lshr_b32 s16, s18, 2')
    e('s_and_b32 s17, s18, 3')
    e('s_cmp_ge_u32 s15, 5')
    e('s_cselect_b32 s40, 1, 0')
    e('s_cmp_ge_u32 s15, 10')
    e('s_cselect_b32 s40, 2, s40')
    e('s_mul_i32 s41, s40, 5')
    e('s_sub_u32 s41, s15, s41')
    e('s_lshl_b32 s42, s14, 7')
    e('s_lshl_b32 s43, s15, 4')
    e('s_add_u32 s42, s42, s43')
    e('s_lshl_b32 s43, s18, 1')
    e('s_add_u32 s42, s42, s43')
    e('s_mul_i32 s43, s42, 1280')
    e('v_lshlrev_b32 v5, 2, v1')
    e('s_cmp_ge_u32 s18, 8')
    e(f's_cbranch_scc1 {name}_loader')
    e('v_and_b32 v2, 15, v1')
    e('v_lshrrev_b32 v3, 4, v1')
    e('v_lshrrev_b32 v4, 1, v2')
    e('v_xor_b32 v4, v4, v3')
    e('s_lshl_b32 s44, s16, 13')
    e(f's_add_u32 s44, s44, {XOFF}')
    e('v_lshlrev_b32 v6, 7, v2')
    e('v_add_u32 v6, s44, v6')
    e('v_lshl_add_u32 v14, v4, 4, v6')
    e('v_xor_b32 v4, 4, v4')
    e('v_lshl_add_u32 v15, v4, 4, v6')
    e('v_lshrrev_b32 v4, 2, v1')
    e('v_and_b32 v6, 7, v4')
    e('v_lshlrev_b32 v7, 8, v4')
    e('v_and_b32 v8, 3, v1')
    e('v_lshl_add_u32 v7, v8, 3, v7')
    e('s_lshr_b32 s44, s17, 1')
    e('s_lshl_b32 s44, s44, 14')
    e('v_add_u32 v7, s44, v7')
    e('s_and_b32 s44, s17, 1')
    e('s_lshl_b32 s44, s44, 2')
    for tt in range(4):
        e(f's_add_u32 s45, s44, {tt}')
        e('v_xor_b32 v8, s45, v6')
        e(f'v_lshl_add_u32 v{16+tt}, v8, 5, v7')
    e('s_lshr_b32 s49, s17, 1')
    e('s_cmp_eq_u32 s40, 0')
    e(f's_cbranch_scc1 {name}_WX')
    e('s_cmp_eq_u32 s40, 1')
    e('s_cselect_b32 s50, s49, 0')
    e('s_cmp_eq_u32 s50, 1')
    e(f's_cbranch_scc1 {name}_WX')

    XF=lambda mt:20+mt*4
    WFr=lambda s_,tt:36+s_*16+tt*4
    ACC=lambda mt,tt:68-4+ (mt*4+tt)*4 + 0 if False else 64+ (mt*4+tt)*4+4
    ACC=lambda mt,tt:64+(mt*4+tt)*4
    WFr=lambda s_,tt:32+s_*16+tt*4
    XF=lambda mt:16+mt*4 if False else 112
    XF=lambda mt:(0,0,0,0)[mt]
    XF=lambda mt:16+mt*4
    def mainloop(wx):
        EXP=os.environ.get('EXP','')
        e('v_mov_b32 v8, v14'); e('v_mov_b32 v9, v15')
        for i in range(4): e(f'v_mov_b32 v{10+i}, v{16+i}')
        def xread(c,ks2,mt):
            if 'noxr' in EXP and mt>=2: return
            e(f'ds_read_b128 v[{XF(mt)}:{XF(mt)+3}], v{8+ks2} offset:{(c%2)*16384+mt*2048}')
        def wread(c,ks2,s_):
            for tt in range(4):
                if 'nowr' in EXP and tt>=2: continue
                for hf in range(2):
                    e(f'ds_read_b64_tr_b16 v[{WFr(s_,tt)+2*hf}:{WFr(s_,tt)+2*hf+1}], v{10+tt} offset:{(c%2)*WSZ+(ks2*32+hf*16)*256}')
        def sync(c):
            e('s_waitcnt lgkmcnt(0)')
            if STAMP:
                e('s_memtime s[78:79]'); e('s_waitcnt lgkmcnt(0)')
            if 'noload' not in EXP and 'free' not in EXP: e('s_barrier')
            if STAMP:
                e('s_memtime s[80:81]'); e('s_waitcnt lgkmcnt(0)')
                e('s_sub_u32 s80, s80, s78')
                if c==0: e('s_mov_b32 s74, 0')
                else: e('s_add_u32 s74, s74, s80')
                e('s_mov_b32 s75, 0')
            if c>0 and c%2==0:
                d=2*WSZ if (c%4)==2 else -2*WSZ
                for i in range(4): e(f'v_add_u32 v{10+i}, {d}, v{10+i}')
        sync(0)
        stamp_mid(A,0)
        wread(0,0,0)
        for mt in range(4): xread(0,0,mt)
        for st in range(20):
            c=st//2; ks2=st%2; s_=st%2
            nc,nk=(c,1) if ks2==0 else (c+1,0)
            last=(st==19)
            if ks2==1 and not last: sync(c+1)
            if not last: wread(nc,nk,1-s_)
            for mt in range(4):
                e(f's_waitcnt lgkmcnt({11 if not last else 3-mt})')
                for tt in range(4):
                    a_=ACC(mt,tt)
                    cc='0' if st==0 else f'v[{a_}:{a_+3}]'
                    xr=f'v[{XF(mt)}:{XF(mt)+3}]'; wr=f'v[{WFr(s_,tt)}:{WFr(s_,tt)+3}]'
                    if wx: e(f'v_mfma_f32_16x16x32_bf16 v[{a_}:{a_+3}], {wr}, {xr}, {cc}')
                    else:  e(f'v_mfma_f32_16x16x32_bf16 v[{a_}:{a_+3}], {xr}, {wr}, {cc}')
                if not last: xread(nc,nk,mt)
        A.nop(10)
        stamp_mid(A,1)

    def consts():
        e(f's_mov_b32 s52, {f2u(LOG2E):#x}')
        e(f's_mov_b32 s53, {f2u(1e-6):#x}')
        e(f's_mov_b32 s54, {f2u(QSCALE):#x}')
    def phi(regs,tmp):
        for i,r in enumerate(regs): e(f'v_mul_f32 v{tmp+i}, s52, v{r}')
        for i,r in enumerate(regs): e(f'v_min_f32 v{tmp+i}, 0, v{tmp+i}')
        for i,r in enumerate(regs): e(f'v_exp_f32 v{tmp+i}, v{tmp+i}')
        for i,r in enumerate(regs): e(f'v_max_f32 v{r}, 0, v{r}')
        for i,r in enumerate(regs): e(f'v_add_f32 v{r}, v{r}, v{tmp+i}')
        for i,r in enumerate(regs): e(f'v_add_f32 v{r}, s53, v{r}')
    def gate_epilogue():
        lab=A.newlabel('k1ng')
        e('s_waitcnt vmcnt(0)')
        e('s_cmp_ge_u32 s15, 8')
        e(f's_cbranch_scc1 {lab}')
        e('s_mov_b32 s55, 0xffff0000')
        for rr in range(2):
            d=20+rr
            first=True
            for i in range(5):
                g=160+i; x=165+rr*5+i
                e(f'v_lshlrev_b32 v22, 16, v{g}')
                e(f'v_lshlrev_b32 v23, 16, v{x}')
                if first: e(f'v_mul_f32 v{d}, v22, v23')
                else: e(f'v_fmac_f32 v{d}, v22, v23')
                first=False
                e(f'v_and_b32 v22, s55, v{g}')
                e(f'v_and_b32 v23, s55, v{x}')
                e(f'v_fmac_f32 v{d}, v22, v23')
        for sh in (8,4,2,1):
            A.nop(2)
            for rr in range(2):
                d=20+rr
                e(f'v_add_f32_dpp v{d}, v{d}, v{d} row_ror:{sh} row_mask:0xf bank_mask:0xf')
        A.nop(1)
        for rr in range(2):
            for q in range(4):
                e(f'v_readlane_b32 s{56+rr*4+q}, v{20+rr}, {q*16}')
        A.nop(2)
        for rr in range(2):
            d=20+rr
            e(f'v_mov_b32 v{d}, s{56+rr*4}')
            for q in range(1,4):
                e(f'v_add_f32 v{d}, s{56+rr*4+q}, v{d}')
            e(f'v_mul_f32 v{d}, s52, v{d}')
            e(f'v_sub_f32 v{d}, 0, v{d}')
            e(f'v_exp_f32 v{d}, v{d}')
            e('s_nop 0')
            e(f'v_add_f32 v{d}, 1.0, v{d}')
            e(f'v_rcp_f32 v{d}, v{d}')
        e('s_nop 0')
        e('v_cmp_eq_u32 vcc, 1, v1')
        A.nop(2)
        e('v_cndmask_b32 v20, v20, v21, vcc')
        e('v_add_u32 v22, s42, v1')
        e('v_lshlrev_b32 v22, 2, v22')
        e(f's_mov_b32 s55, {GATE}')
        e('s_mov_b64 exec, 3')
        e(f'buffer_store_dword v20, v22, s[28:31], s55 offen{STF}')
        e('s_mov_b64 exec, -1')
        A.label(lab)

    def wx_epi(kind):
        base={'Aq':PA,'Bq':QB,'Bk':KB}[kind]
        allregs=[ACC(mt,tt)+r for mt in range(4) for tt in range(4) for r in range(4)]
        if kind=='Aq':
            for h in range(4): phi(allregs[16*h:16*h+16],32)
        if kind=='Bq':
            for r in allregs: e(f'v_mul_f32 v{r}, s54, v{r}')
        e('s_lshl_b32 s56, s41, 5')
        e('s_and_b32 s57, s17, 1')
        e('s_lshl_b32 s57, s57, 4')
        e('s_add_u32 s56, s56, s57')
        e('v_add_u32 v4, s56, v3')
        e('s_lshl_b32 s57, s14, 2')
        e('s_lshl_b32 s58, s16, 1')
        e('s_add_u32 s57, s57, s58')
        if kind=='Bk':
            e('v_and_b32 v5, 8, v2')
            e('v_lshlrev_b32 v5, 1, v5')
            e('v_and_b32 v6, 7, v2')
            e('v_add_u32 v5, v5, v6')
            dodd=8
        else:
            e('v_mov_b32 v5, v2')
            dodd=16
        e(f's_mov_b32 s59, {base}')
        for tt in range(4):
            e(f'v_add_u32 v6, {4*tt}, v4')
            e('v_mul_u32_u24 v7, 205, v6')
            e('v_lshrrev_b32 v7, 10, v7')
            e('v_mul_u32_u24 v8, 5, v7')
            e('v_sub_u32 v8, v6, v8')
            e('v_lshlrev_b32 v9, 6, v7')
            e('v_add_u32 v9, s57, v9')
            e('v_mul_u32_u24 v9, 1280, v9')
            if kind=='Aq':
                e('v_and_b32 v10, 1, v8')
                e('v_lshrrev_b32 v11, 1, v8')
            else:
                e('v_lshrrev_b32 v10, 1, v8')
                e('v_and_b32 v11, 1, v8')
            e('v_lshlrev_b32 v10, 9, v10')
            e('v_lshl_add_u32 v10, v11, 3, v10')
            e('v_lshl_add_u32 v10, v5, 4, v10')
            e('v_lshlrev_b32 v11, 3, v5')
            e('v_add_u32 v11, 1024, v11')
            e('v_cmp_eq_u32 vcc, 4, v8')
            A.nop(2)
            e('v_cndmask_b32 v12, v10, v11, vcc')
            e(f'v_add_u32 v10, {dodd*16}, v10')
            e(f'v_add_u32 v11, {dodd*8}, v11')
            e('v_cndmask_b32 v13, v10, v11, vcc')
            e('v_add_u32 v12, v12, v9')
            e('v_add_u32 v13, v13, v9')
            for mt in range(4):
                a_=ACC(mt,tt)
                pk=32+(tt*4+mt)*2
                e(f'v_cvt_pk_bf16_f32 v{pk}, v{a_}, v{a_+1}')
                e(f'v_cvt_pk_bf16_f32 v{pk+1}, v{a_+2}, v{a_+3}')
                e(f'buffer_store_dwordx2 v[{pk}:{pk+1}], v{12+(mt&1)}, s[28:31], s59 offen offset:{(mt>>1)*1280}{STF}')
            if kind!='Aq':
                for mt in range(4):
                    a_=ACC(mt,tt)
                    e(f'v_mul_f32 v{14+mt}, v{a_}, v{a_}')
                    for r in range(1,4): e(f'v_fmac_f32 v{14+mt}, v{a_+r}, v{a_+r}')
                e('v_max_f32 v14, v14, v15')
                e('v_max3_f32 v14, v16, v17, v14')
                for sh in (8,4,2,1):
                    A.nop(2)
                    e(f'v_max_f32_dpp v14, v14, v14 row_ror:{sh} row_mask:0xf bank_mask:0xf')
                e('s_lshl_b32 s60, s14, 1')
                e('s_add_u32 s60, s60, s16')
                e('s_lshl_b32 s60, s60, 2')
                e(f's_add_u32 s60, s60, {NRM+(160*32*4 if kind=="Bk" else 0)}')
                e('v_lshlrev_b32 v15, 7, v6')
                e('s_mov_b32 exec_lo, 0x00010001')
                e('s_mov_b32 exec_hi, 0x00010001')
                e(f'buffer_store_dword v14, v15, s[28:31], s60 offen{STF}')
                e('s_mov_b64 exec, -1')
                A.nop(1)

    mainloop(False)
    consts()
    e('v_and_b32 v2, 15, v1')
    e('v_lshrrev_b32 v3, 4, v1')
    e(f's_mov_b32 s59, {PKT}')
    e('s_cmp_eq_u32 s40, 2')
    e(f's_cselect_b32 s59, {VAT}, s59')
    e('s_lshl_b32 s60, s40, 1')
    e('s_add_u32 s60, s60, s49')
    e('s_cmp_eq_u32 s60, 5')
    e(f's_cselect_b32 s59, {VB}, s59')
    lab=A.newlabel('k1nophi')
    e('s_cmp_eq_u32 s40, 1')
    e(f's_cbranch_scc0 {lab}')
    allregs=[ACC(mt,tt)+r for mt in range(4) for tt in range(4) for r in range(4)]
    for h in range(4): phi(allregs[16*h:16*h+16],32)
    A.label(lab)
    e('s_lshl_b32 s56, s41, 7')
    e('s_and_b32 s57, s17, 1')
    e('s_lshl_b32 s57, s57, 6')
    e('s_add_u32 s56, s56, s57')
    e('v_add_u32 v4, s56, v2')
    e('s_lshl_b32 s57, s14, 2')
    e('s_lshl_b32 s58, s16, 1')
    e('s_add_u32 s57, s57, s58')
    e('v_mul_u32_u24 v5, 320, v3')
    for tt in range(4):
        e(f'v_add_u32 v6, {16*tt}, v4')
        e('v_mul_u32_u24 v7, 3277, v6')
        e('v_lshrrev_b32 v7, 16, v7')
        e('v_mul_u32_u24 v8, 20, v7')
        e('v_sub_u32 v8, v6, v8')
        e('v_lshlrev_b32 v9, 6, v7')
        e('v_add_u32 v9, s57, v9')
        e('v_mul_u32_u24 v9, 1280, v9')
        e('v_add_u32 v9, v9, v5')
        e('v_lshl_add_u32 v9, v8, 4, v9')
        for up in range(2):
            pk=32+(tt*2+up)*4
            for a2 in range(2):
                a_=ACC(2*up+a2,tt)
                e(f'v_cvt_pk_bf16_f32 v{pk+2*a2}, v{a_}, v{a_+1}')
                e(f'v_cvt_pk_bf16_f32 v{pk+2*a2+1}, v{a_+2}, v{a_+3}')
            e(f'buffer_store_dwordx4 v[{pk}:{pk+3}], v9, s[28:31], s59 offen offset:{up*1280}{STF}')
        A.nop(1)
    e(f's_branch {name}_fin')

    A.label(f'{name}_WX')
    mainloop(True)
    consts()
    e('v_and_b32 v2, 15, v1')
    e('v_lshrrev_b32 v3, 4, v1')
    e('s_cmp_eq_u32 s40, 1')
    e(f's_cbranch_scc1 {name}_Bk')
    e('s_cmp_eq_u32 s49, 1')
    e(f's_cbranch_scc1 {name}_Bq')
    wx_epi('Aq')
    e(f's_branch {name}_fin')
    A.label(f'{name}_Bq')
    wx_epi('Bq')
    e(f's_branch {name}_fin')
    A.label(f'{name}_Bk')
    wx_epi('Bk')
    e(f's_branch {name}_fin')
    A.label(f'{name}_loader')
    if 'noload' in os.environ.get('EXP',''): e(f's_branch {name}_fin')
    e('s_sub_u32 s44, s18, 8')
    TOUCH=int(os.environ.get('TOUCH','1'))
    e('v_subrev_u32 v7, 512, v0')
    e('v_mov_b32 v118, v0')
    def do_touch():
        e('v_subrev_u32 v119, 512, v118')
        e('v_lshlrev_b32 v117, 7, v119')
        e('s_mul_i32 s50, s2, 10240')
        e('s_mul_i32 s51, s2, 11264')
        e('v_mov_b32 v116, 0x7ffffff0')
        e('v_cmp_gt_u32 vcc, 80, v119')
        A.nop(2)
        e('v_cndmask_b32 v118, v116, v117, vcc')
        e('buffer_load_dword v126, v118, s[24:27], s50 offen')
        e('buffer_load_dword v126, v118, s[36:39], s50 offen')
        e('v_cmp_gt_u32 vcc, 88, v119')
        A.nop(2)
        e('v_cndmask_b32 v118, v116, v117, vcc')
        e('buffer_load_dword v127, v118, s[20:23], s51 offen')
    if TOUCH==1:
        do_touch(); log0=1
    e('v_lshrrev_b32 v6, 4, v1')
    e('v_and_b32 v7, 15, v1')
    e('s_lshr_b32 s45, s44, 2')
    e('s_lshl_b32 s45, s45, 5')
    e('s_and_b32 s46, s44, 1')
    e('s_lshl_b32 s46, s46, 4')
    e('s_add_u32 s45, s45, s46')
    e('s_bfe_u32 s46, s44, 0x10001')
    e('s_lshl_b32 s46, s46, 2')
    e('s_add_u32 s45, s45, s46')
    e('s_lshl_b32 s46, s15, 8')
    e('v_add_u32 v8, s45, v6')
    e('v_mul_u32_u24 v8, 3840, v8')
    e('v_add_u32 v8, s46, v8')
    e('v_lshlrev_b32 v9, 1, v6')
    e('v_xor_b32 v9, v9, v7')
    e('v_lshl_add_u32 v120, v9, 4, v8')
    e('v_xor_b32 v9, 8, v9')
    e('v_lshl_add_u32 v121, v9, 4, v8')
    e('v_lshrrev_b32 v6, 3, v1')
    e('v_and_b32 v7, 7, v1')
    e('s_lshl_b32 s45, s14, 7')
    e('s_lshl_b32 s46, s44, 4')
    e('s_add_u32 s45, s45, s46')
    e('v_add_u32 v8, s45, v6')
    e('v_mul_u32_u24 v8, 1280, v8')
    e('v_lshl_add_u32 v122, v7, 4, v8')
    e('v_lshrrev_b32 v9, 1, v6')
    e('v_xor_b32 v9, v9, v7')
    e('s_lshl_b32 s46, s44, 11')
    e(f's_add_u32 s46, s46, {XOFF}')
    e('v_lshlrev_b32 v8, 7, v6')
    e('v_add_u32 v8, s46, v8')
    e('v_lshl_add_u32 v123, v9, 4, v8')
    e('v_xor_b32 v9, 4, v9')
    e('v_lshl_add_u32 v124, v9, 4, v8')
    e('s_lshl_b32 s46, s44, 11')
    e('s_mov_b32 s60, 0'); e('s_mov_b32 s61, 10240')
    e('v_mov_b32 v125, v1')
    XS=lambda c,i:(c*2+i)*4
    log=[]
    def Lw(c):
        for m,sr in enumerate((24,36)):
            for i in range(2):
                e(f's_mov_b32 s47, {c*245760+i*30720}')
                e(f's_add_u32 m0, s46, {(c%4)*WSZ+m*16384+i*1024}')
                e('s_nop 0')
                if 'nodma' in os.environ.get('EXP',''): e(f'buffer_load_dword v126, v{120+i}, s[{sr}:{sr+3}], s47 offen')
                else: e(f'buffer_load_dwordx4 v{120+i}, s[{sr}:{sr+3}], s47 offen lds')
                log.append(('W',c))
    def Lx(c):
        for i in range(2):
            e(f'buffer_load_dwordx4 v[{XS(c,i)}:{XS(c,i)+3}], v122, s[20:23], s{60+i} offen offset:{c*128}'); log.append(('x',c))
    def Lsync(c):
        last=max(i for i,t in enumerate(log) if t in (('x',c),('W',c)))
        if STAMP:
            e('s_memtime s[78:79]'); e('s_waitcnt lgkmcnt(0)')
        e(f's_waitcnt vmcnt({len(log)-1-last})')
        if STAMP:
            e('s_memtime s[80:81]'); e('s_waitcnt lgkmcnt(0)')
            e('s_sub_u32 s82, s80, s78')
            if c==0: e('s_mov_b32 s74, 0')
            else: e('s_add_u32 s74, s74, s82')
        for i in range(2):
            if 'nodsw' in os.environ.get('EXP',''): continue
            e(f'ds_write_b128 v{123+i}, v[{XS(c,i)}:{XS(c,i)+3}] offset:{(c%2)*16384+i*1024}')
        e('s_waitcnt lgkmcnt(0)')
        if STAMP:
            e('s_memtime s[78:79]'); e('s_waitcnt lgkmcnt(0)')
        if 'free' not in os.environ.get('EXP',''): e('s_barrier')
        if STAMP:
            e('s_memtime s[80:81]'); e('s_waitcnt lgkmcnt(0)')
            e('s_sub_u32 s82, s80, s78')
            if c==0: e('s_mov_b32 s76, 0')
            else: e('s_add_u32 s76, s76, s82')
            e('s_mov_b32 s75, 0'); e('s_mov_b32 s77, 0')
    sched={-1:[('x',0),('W',0),('x',1),('W',1),('x',2),('W',2)],0:[('x',3),('W',3),('x',4),('x',5)],1:[('W',4),('x',6),('x',7)],2:[('W',5),('x',8),('x',9)],3:[('W',6)],4:[('W',7)],5:[('W',8)],6:[('W',9)]}
    for c in range(-1,10):
        if c>=0: Lsync(c)
        for k_,c_ in sched.get(c,[]):
            (Lw if k_=='W' else Lx)(c_)
            if TOUCH==2 and (k_,c_)==('W',1):
                do_touch()
                log.extend([('t',0)]*3)
    e('s_load_dwordx2 s[48:49], s[0:1], 16')
    e('s_load_dwordx2 s[50:51], s[0:1], 40')
    e('s_lshl_b32 s52, s2, 3')
    e('s_add_u32 s52, s52, s44')
    e('s_mul_i32 s53, s52, 5243')
    e('s_lshr_b32 s53, s53, 20')
    e('s_mul_i32 s54, s53, 200')
    e('s_sub_u32 s54, s52, s54')
    e('s_mul_i32 s55, s54, 52429')
    e('s_lshr_b32 s55, s55, 18')
    e('s_mul_i32 s56, s55, 5')
    e('s_sub_u32 s56, s54, s56')
    e('s_waitcnt lgkmcnt(0)')
    srd(A,64,48,640*1280)
    srd(A,60,50,640*1280)
    e('v_and_b32 v2, 15, v125')
    e('v_lshrrev_b32 v3, 4, v125')
    e('s_lshl_b32 s57, s55, 2')
    e('v_add_u32 v3, s57, v3')
    e('v_mul_u32_u24 v6, 205, v3')
    e('v_lshrrev_b32 v6, 10, v6')
    e('v_mul_u32_u24 v7, 5, v6')
    e('v_sub_u32 v7, v3, v7')
    e('v_mul_u32_u24 v6, 20, v6')
    e('v_and_b32 v8, 1, v7')
    e('v_lshlrev_b32 v8, 2, v8')
    e('v_cmp_eq_u32 vcc, 4, v7')
    e('v_mov_b32 v9, 16')
    A.nop(1)
    e('v_cndmask_b32 v8, v8, v9, vcc')
    e('v_add_u32 v6, v6, v8')
    e('v_mov_b32 v9, 8')
    e('v_cndmask_b32 v9, v9, 0, vcc')
    e('s_mul_i32 s57, s53, 160')
    e('s_lshl_b32 s58, s56, 5')
    e('s_add_u32 s57, s57, s58')
    e('v_lshlrev_b32 v10, 1, v2')
    e('v_add_u32 v10, s57, v10')
    e('v_mov_b32 v11, 0x7ffffff0')
    labw=A.newlabel('k1now')
    e('s_cmp_ge_u32 s52, 1600')
    e(f's_cbranch_scc1 {labw}')
    for half in range(2):
        if half==0: e('v_mov_b32 v12, v6')
        else: e('v_add_u32 v12, v6, v9')
        e('v_mul_u32_u24 v12, 1280, v12')
        e('v_add_u32 v12, v12, v10')
        e('v_cmp_gt_u32 vcc, 2, v7')
        if half==0:
            e('v_cmp_eq_u32 s[58:59], 4, v7')
            e('s_or_b64 vcc, vcc, s[58:59]')
        A.nop(2)
        e('v_cndmask_b32 v13, v11, v12, vcc')
        e('v_cndmask_b32 v14, v12, v11, vcc')
        for j in range(4):
            e(f'buffer_load_ushort v{40+half*4+j}, v13, s[60:63], 0 offen offset:{j*1280}')
            e(f'buffer_load_ushort v{48+half*4+j}, v14, s[64:67], 0 offen offset:{j*1280}')
    e('s_waitcnt vmcnt(0)')
    for j in range(8): e(f'v_or_b32 v{40+j}, v{40+j}, v{48+j}')
    for j in range(4):
        e(f'v_lshl_or_b32 v{40+j}, v{41+2*j}, 16, v{40+2*j}')
    e('v_lshlrev_b32 v5, 4, v125')
    e('s_lshl_b32 s53, s52, 10')
    e(f's_add_u32 s53, s53, {WF}')
    e(f'buffer_store_dwordx4 v[40:43], v5, s[28:31], s53 offen{STF}')
    A.label(labw)
    e('s_cmp_ge_u32 s15, 8')
    e(f's_cbranch_scc1 {name}_fin')
    e('s_lshl_b32 s42, s14, 7')
    e('s_lshl_b32 s43, s15, 4')
    e('s_add_u32 s42, s42, s43')
    e('s_lshl_b32 s43, s44, 1')
    e('s_add_u32 s42, s42, s43')
    e('s_mul_i32 s43, s42, 1280')
    e('v_lshlrev_b32 v5, 2, v125')
    for i in range(5):
        e(f'buffer_load_dword v{100+i}, v5, s[32:35], 0 offen offset:{i*256}')
    for rr in range(2):
        for i in range(5):
            e(f'buffer_load_dword v{105+rr*5+i}, v5, s[20:23], s43 offen offset:{rr*1280+i*256}')
    e('s_waitcnt vmcnt(0)')
    e('s_mov_b32 s55, 0xffff0000')
    for rr in range(2):
        d=20+rr
        first=True
        for i in range(5):
            g=100+i; x=105+rr*5+i
            e(f'v_lshlrev_b32 v30, 16, v{g}')
            e(f'v_lshlrev_b32 v31, 16, v{x}')
            if first: e(f'v_mul_f32 v{d}, v30, v31')
            else: e(f'v_fmac_f32 v{d}, v30, v31')
            first=False
            e(f'v_and_b32 v30, s55, v{g}')
            e(f'v_and_b32 v31, s55, v{x}')
            e(f'v_fmac_f32 v{d}, v30, v31')
    for sh in (8,4,2,1):
        A.nop(2)
        for rr in range(2):
            d=20+rr
            e(f'v_add_f32_dpp v{d}, v{d}, v{d} row_ror:{sh} row_mask:0xf bank_mask:0xf')
    A.nop(1)
    for rr in range(2):
        for q in range(4):
            e(f'v_readlane_b32 s{46+rr*4+q}, v{20+rr}, {q*16}')
    A.nop(2)
    for rr in range(2):
        d=20+rr
        e(f'v_mov_b32 v{d}, s{46+rr*4}')
        for q in range(1,4):
            e(f'v_add_f32 v{d}, s{46+rr*4+q}, v{d}')
    e('v_cmp_eq_u32 vcc, 1, v125')
    A.nop(2)
    e('v_cndmask_b32 v20, v20, v21, vcc')
    e(f's_mov_b32 s52, {f2u(LOG2E):#x}')
    e('v_mul_f32 v20, s52, v20')
    e('v_sub_f32 v20, 0, v20')
    e('v_exp_f32 v20, v20')
    e('s_nop 0')
    e('v_add_f32 v20, 1.0, v20')
    e('v_rcp_f32 v20, v20')
    e('v_add_u32 v22, s42, v125')
    e('v_lshlrev_b32 v22, 2, v22')
    e(f's_mov_b32 s55, {GATE}')
    e('s_mov_b64 exec, 3')
    e(f'buffer_store_dword v20, v22, s[28:31], s55 offen{STF}')
    e('s_mov_b64 exec, -1')
    A.label(f'{name}_fin')
    stamp_end(A,0,12,18)
    A.label(f'{name}_done')
    e('s_endpgm')

def k1_desc(name='k1_kernel'):
    return f'''.amdhsa_kernel {name}
  .amdhsa_next_free_vgpr 128
  .amdhsa_next_free_sgpr 102
  .amdhsa_accum_offset 128
  .amdhsa_group_segment_fixed_size 0
  .amdhsa_kernarg_size 80
  .amdhsa_user_sgpr_count 2
  .amdhsa_user_sgpr_kernarg_segment_ptr 1
  .amdhsa_system_sgpr_workgroup_id_x 1
.end_amdhsa_kernel
'''
K1_LAUNCH='; @launch kernel=k1_kernel grid=(240,1,1) block=(1024,1,1) lds=163840'
```

```python
from asmlib import *
from layout import *
import struct, os
def f2u(x):
    return struct.unpack('<I', struct.pack('<f', x))[0]
STF=os.environ.get('STFLAGS','')
LDS_MAX=0
LDS_KV=8192
LDS_RED=32768
K2_LDS=LDS_RED+98304
THRESH=48.0
EXP=os.environ.get('EXP2','')
PF=int(os.environ.get('PF','0'))

def gen_k2(A, name='k2_kernel'):
    e=A.e
    A.lines.append('.p2align 8')
    A.lines.append(f'.globl {name}')
    A.lines.append(f'.type {name},@function')
    A.label(name)
    e('s_cmp_ge_u32 s2, 256')
    e(f's_cbranch_scc1 {name}_done')
    stamp_start(A)
    e('s_load_dwordx2 s[4:5], s[0:1], 72')
    e('s_and_b32 s3, s2, 7')
    e('s_lshr_b32 s6, s2, 3')
    e('s_lshl_b32 s12, s3, 2')
    e('s_lshr_b32 s7, s6, 3')
    e('s_add_u32 s12, s12, s7')
    e('s_and_b32 s13, s6, 7')
    e('v_lshrrev_b32 v2, 6, v0')
    e('v_and_b32 v1, 63, v0')
    e('s_nop 0')
    e('v_readfirstlane_b32 s14, v2')
    e('s_waitcnt lgkmcnt(0)')
    srd(A,8,4,WS_END)
    e('s_and_b32 s15, s14, 1')
    e('s_lshr_b32 s16, s14, 1')
    Q1=lambda qi:16+qi*4
    Q2=lambda qi:32+qi*4
    KF1=lambda b:48+16*b
    KF2=lambda b:52+16*b
    VF1=lambda b:56+16*b
    VF2=lambda b:60+16*b
    SB=lambda b:80+16*b
    PB=lambda b:112+8*b
    OA=lambda qi:128+16*qi
    KVA=192
    PKF=lambda b:208+4*b
    VAF=lambda b:216+4*b
    e('s_mov_b32 s18, 0x000fffff')
    e('s_mov_b32 s19, 0x000fffff')
    for qi in range(4):
        for r in range(4): e(f'v_mov_b32 v{Q2(qi)+r}, 0')
    e('v_lshlrev_b32 v5, 4, v1')
    e('v_lshlrev_b32 v6, 3, v1')
    e('v_and_b32 v7, 31, v1')
    e('v_lshrrev_b32 v8, 5, v1')
    e('v_mul_u32_u24 v9, 320, v8')
    e('v_lshl_add_u32 v9, v7, 4, v9')
    e('v_cmp_gt_u32 vcc, 32, v1')
    e('v_mov_b32 v10, 0x3f803f80')
    A.nop(2)
    e('v_cndmask_b32 v11, 0, v10, vcc')
    e('v_cmp_eq_u32 vcc, 20, v7')
    A.nop(2)
    e('v_cndmask_b32 v12, 0, v10, vcc')
    for b in range(2):
        e(f'v_mov_b32 v{KF2(b)}, 0'); e(f'v_mov_b32 v{KF2(b)+1}, 0')
        e(f'v_mov_b32 v{KF2(b)+2}, v11'); e(f'v_mov_b32 v{KF2(b)+3}, 0')
        for r in range(4):
            e(f'v_mov_b32 v{VF1(b)+r}, v12'); e(f'v_mov_b32 v{VF2(b)+r}, v12')
            e(f'v_mov_b32 v{PKF(b)+r}, 0'); e(f'v_mov_b32 v{VAF(b)+r}, v12')
    e('s_lshl_b32 s22, s12, 6')
    e('s_lshl_b32 s23, s13, 3')
    e('s_add_u32 s22, s22, s23')
    e('s_lshl_b32 s23, s15, 2')
    e('s_add_u32 s23, s22, s23')
    e('s_mul_i32 s24, s23, 1280')
    e(f's_add_u32 s24, s24, {QB}')
    for qi in range(4):
        e(f'buffer_load_dwordx4 v[{Q1(qi)}:{Q1(qi)+3}], v5, s[8:11], s24 offen offset:{qi*1280}')
    e('s_mov_b32 exec_hi, 0')
    e('s_add_u32 s25, s24, 1024')
    for qi in range(4):
        e(f'buffer_load_dwordx2 v[{Q2(qi)}:{Q2(qi)+1}], v6, s[8:11], s25 offen offset:{qi*1280}')
    e('s_mov_b32 exec_hi, -1')
    e('v_mul_u32_u24 v13, 160*128, v8')
    e('v_lshl_add_u32 v13, v7, 2, v13')
    e('s_mul_i32 s26, s12, 640')
    e(f's_add_u32 s26, s26, {NRM}')
    for g in range(5):
        e(f'buffer_load_dword v{236+g}, v13, s[8:11], s26 offen offset:{g*128}')
    e('s_add_u32 s28, s23, s16')
    e('s_mul_i32 s29, s28, 1280')
    e(f's_add_u32 s29, s29, {PA}')
    e('buffer_load_dwordx4 v[224:227], v5, s[8:11], s29 offen')
    for r in range(4): e(f'v_mov_b32 v{228+r}, 0')
    e('s_mov_b32 exec_hi, 0')
    e('buffer_load_dwordx2 v[228:229], v6, s[8:11], s29 offen offset:1024')
    e('s_mov_b32 exec_hi, -1')
    e('s_lshl_b32 s30, s15, 2')
    e('s_add_u32 s30, s30, s16')
    e('s_lshl_b32 s30, s30, 5')
    e('s_lshl_b32 s31, s13, 8')
    e('s_add_u32 s30, s30, s31')
    e('v_add_u32 v233, s30, v7')
    e('v_lshlrev_b32 v234, 2, v233')
    e(f's_mov_b32 s31, {GATE}')
    e('buffer_load_dword v232, v234, s[8:11], s31 offen')
    e('s_lshl_b32 s32, s12, 6')
    e('s_lshl_b32 s33, s16, 4')
    e('s_add_u32 s32, s32, s33')
    e('s_mul_i32 s36, s32, 1280')
    e(f's_add_u32 s34, s36, {KB}')
    e(f's_add_u32 s36, s36, {VB}')
    e('s_mov_b32 s40, s34')
    e('s_lshl_b32 s32, s12, 6')
    e('s_lshl_b32 s33, s14, 3')
    e('s_add_u32 s32, s32, s33')
    e('s_mul_i32 s37, s32, 1280')
    e(f's_add_u32 s38, s37, {VAT}')
    e(f's_add_u32 s37, s37, {PKT}')
    def loadK(b):
        e(f'buffer_load_dwordx4 v[{KF1(b)}:{KF1(b)+3}], v5, s[8:11], s34 offen')
        e('s_mov_b32 exec_hi, 0')
        e(f'buffer_load_dwordx2 v[{KF2(b)}:{KF2(b)+1}], v6, s[8:11], s34 offen offset:1024')
        e('s_mov_b32 exec_hi, -1')
        e('s_add_u32 s34, s34, 1280')
    def loadV(b):
        e('s_mov_b64 exec, s[18:19]')
        e(f'buffer_load_dwordx4 v[{VF1(b)}:{VF1(b)+3}], v9, s[8:11], s36 offen')
        e(f'buffer_load_dwordx4 v[{VF2(b)}:{VF2(b)+3}], v9, s[8:11], s36 offen offset:640')
        e('s_mov_b64 exec, -1')
        e('s_add_u32 s36, s36, 1280')
    def loadA(b):
        e('s_mov_b64 exec, s[18:19]')
        e(f'buffer_load_dwordx4 v[{PKF(b)}:{PKF(b)+3}], v9, s[8:11], s37 offen')
        e(f'buffer_load_dwordx4 v[{VAF(b)}:{VAF(b)+3}], v9, s[8:11], s38 offen')
        e('s_mov_b64 exec, -1')
        e('s_add_u32 s37, s37, 640')
        e('s_add_u32 s38, s38, 640')
    loadK(0)
    loadV(0)
    loadA(0)
    if PF:
        e('s_mul_i32 s20, s12, 64*1280')
        e('s_mul_i32 s21, s14, 80*128')
        e('s_add_u32 s20, s20, s21')
        e('v_lshlrev_b32 v13, 7, v1')
        for reg,base in enumerate((KB,VB,PKT,VAT)):
            e(f's_add_u32 s21, s20, {base}')
            e(f'buffer_load_dword v{252+reg}, v13, s[8:11], s21 offen')
            e('s_add_u32 s21, s21, 8192')
            e('s_mov_b64 exec, 0xffff')
            e(f'buffer_load_dword v{252+reg}, v13, s[8:11], s21 offen')
            e('s_mov_b64 exec, -1')
    for i in range(64): e(f'v_mov_b32 v{128+i}, 0')
    for i in range(16): e(f'v_mov_b32 v{KVA+i}, 0')
    stamp_mid(A,0)
    e('s_waitcnt vmcnt(0)')
    stamp_mid(A,1)
    for sh in (8,4,2,1):
        A.nop(2)
        for g in range(5):
            e(f'v_max_f32_dpp v{236+g}, v{236+g}, v{236+g} row_ror:{sh} row_mask:0xf bank_mask:0xf')
    A.nop(1)
    for g in range(5):
        for q in range(4):
            e(f'v_readlane_b32 s{44+g*4+q}, v{236+g}, {q*16}')
    A.nop(3)
    for g in range(5):
        e(f's_max_u32 s{44+g*4}, s{44+g*4}, s{44+g*4+1}')
        e(f's_max_u32 s{44+g*4+2}, s{44+g*4+2}, s{44+g*4+3}')
    e('v_mov_b32 v14, s44')
    e('v_mov_b32 v15, s46')
    for g in range(1,5):
        e(f'v_add_f32 v14, s{44+g*4}, v14')
        e(f'v_add_f32 v15, s{44+g*4+2}, v15')
    e('v_mul_f32 v14, v14, v15')
    e('v_sqrt_f32 v14, v14')
    e('s_nop 0')
    e(f'v_mul_f32 v14, {f2u(1.02):#x}, v14')
    e('s_nop 0')
    e('v_readfirstlane_b32 s42, v14')
    A.nop(3)
    for qi in range(4): e(f'v_mov_b32 v{236+qi}, v14')
    e(f's_cmp_gt_u32 s42, {f2u(THRESH):#x}')
    e(f's_cbranch_scc0 {name}_main')
    for qi in range(4): e(f'v_mov_b32 v{236+qi}, 0xff800000')
    e('s_mov_b32 s34, s40')
    e('s_mov_b32 s43, 0')
    A.label(f'{name}_fb')
    loadK(1)
    e('s_waitcnt vmcnt(0)')
    for qi in range(4):
        e(f'v_mfma_f32_32x32x16_bf16 v[{SB(0)}:{SB(0)+15}], v[{KF1(1)}:{KF1(1)+3}], v[{Q1(qi)}:{Q1(qi)+3}], 0')
        e(f'v_mfma_f32_32x32x16_bf16 v[{SB(0)}:{SB(0)+15}], v[{KF2(1)}:{KF2(1)+3}], v[{Q2(qi)}:{Q2(qi)+3}], v[{SB(0)}:{SB(0)+15}]')
        A.nop(14)
        for i in range(8):
            e(f'v_max3_f32 v{236+qi}, v{SB(0)+2*i}, v{SB(0)+2*i+1}, v{236+qi}')
        A.nop(2)
    e('s_add_u32 s43, s43, 1')
    e('s_cmp_lt_u32 s43, 16')
    e(f's_cbranch_scc1 {name}_fb')
    for qi in range(4):
        e(f'v_mov_b32 v2, v{236+qi}')
        e(f'v_mov_b32 v3, v{236+qi}')
        A.nop(2)
        e('v_permlane32_swap_b32 v2, v3')
        A.nop(2)
        e(f'v_max_f32 v{236+qi}, v2, v3')
    e('s_lshl_b32 s44, s14, 10')
    e('v_lshlrev_b32 v2, 2, v1')
    e('v_add_u32 v3, s44, v2')
    for qi in range(4):
        e(f'ds_write_b32 v3, v{236+qi} offset:{LDS_MAX+qi*256}')
    e('s_waitcnt lgkmcnt(0)')
    e('s_barrier')
    e('s_lshl_b32 s44, s15, 10')
    e('v_add_u32 v3, s44, v2')
    for qi in range(4):
        for kc in range(4):
            e(f'ds_read_b32 v{240+kc}, v3 offset:{LDS_MAX+kc*2048+qi*256}')
        e('s_waitcnt lgkmcnt(0)')
        e(f'v_max3_f32 v{236+qi}, v240, v241, v242')
        e(f'v_max_f32 v{236+qi}, v{236+qi}, v243')
    e('s_mov_b32 s34, s40')
    loadK(0)
    e('s_waitcnt vmcnt(0)')
    A.label(f'{name}_main')
    e('s_mov_b32 exec_hi, 0')
    for qi in range(4):
        e(f'v_sub_f32 v2, 0, v{236+qi}')
        e('v_cvt_pk_bf16_f32 v3, v2, v2')
        e('v_lshlrev_b32 v3, 16, v3')
        e('v_sub_f32 v4, v2, v3')
        e(f'v_cvt_pk_bf16_f32 v{Q2(qi)+2}, v2, v4')
    e('s_mov_b32 exec_hi, -1')
    A.nop(2)
    def mf(d,a_,b_,c_):
        cc='0' if c_ is None else f'v[{c_}:{c_+15}]'
        e(f'v_mfma_f32_32x32x16_bf16 v[{d}:{d+15}], v[{a_}:{a_+3}], v[{b_}:{b_+3}], {cc}')
    mf(SB(0),KF1(0),Q1(0),None)
    mf(SB(0),KF2(0),Q2(0),SB(0))
    A.nop(16)
    e('s_mov_b32 s43, 0')
    for r in range(8): e(f'v_mov_b32 v{PB(1)+r}, 0')
    A.nop(2)
    if 'prio' in EXP:
        pl=A.newlabel('k2p')
        e('s_cmp_ge_u32 s14, 4')
        e(f's_cbranch_scc0 {pl}')
        e('s_setprio 1')
        A.label(pl)
    stamp_mid(A,2)
    A.label(f'{name}_loop')
    def grp(sb,g):
        for i in range(4): e(f'v_exp_f32 v{sb+4*g+i}, v{sb+4*g+i}')
    def cv(sb,pb,g):
        e(f'v_cvt_pk_bf16_f32 v{pb+2*g}, v{sb+4*g}, v{sb+4*g+1}')
        e(f'v_cvt_pk_bf16_f32 v{pb+2*g+1}, v{sb+4*g+2}, v{sb+4*g+3}')
    for tb in range(2):
        for qi in range(4):
            n=tb*4+qi
            cur=SB(n%2); nx=SB((n+1)%2); P=PB(n%2); Pp=PB((n+1)%2)
            nb = tb if qi<3 else 1-tb
            nq=(qi+1)%4
            pq=(qi-1)%4; pbuf= tb if qi>0 else 1-tb
            if qi==3: e('s_waitcnt vmcnt(4)')
            mf(nx,KF1(nb),Q1(nq),None)
            if qi==0 and 'noK' not in EXP: loadK(1-tb)
            grp(cur,0); cv(cur,P,0)
            mf(nx,KF2(nb),Q2(nq),nx)
            grp(cur,1); cv(cur,P,1)
            mf(OA(pq),VF2(pbuf),Pp+4,OA(pq))
            if qi==1:
                e('s_waitcnt vmcnt(2)')
                if 'noA' not in EXP: mf(KVA,PKF(tb),VAF(tb),KVA)
                if 'noV' not in EXP: loadV(1-tb)
            if qi==2 and 'noA' not in EXP: loadA(1-tb)
            grp(cur,2); cv(cur,P,2)
            if qi==0: e('s_waitcnt vmcnt(4)')
            mf(OA(qi),VF1(tb),P,OA(qi))
            grp(cur,3); cv(cur,P,3)
    e('s_add_u32 s43, s43, 1')
    e('s_cmp_lt_u32 s43, 8')
    e(f's_cbranch_scc1 {name}_loop')
    A.nop(2)
    mf(OA(3),VF2(1),PB(1)+4,OA(3))
    A.nop(16)
    e('s_waitcnt vmcnt(0)')
    for qi in range(4):
        e('s_lshl_b32 s44, s15, 2')
        e('s_add_u32 s44, s44, s16')
        e(f's_add_u32 s44, s44, {qi*8}')
        e('s_mul_i32 s44, s44, 3072')
        e(f's_add_u32 s44, s44, {LDS_RED}')
        e('v_add_u32 v2, s44, v5')
        for q in range(3):
            e(f'ds_write_b128 v2, v[{OA(qi)+4*q}:{OA(qi)+4*q+3}] offset:{q*1024}')
    e('s_mul_i32 s44, s14, 3072')
    e('v_add_u32 v2, s44, v5')
    for q in range(3):
        e(f'ds_write_b128 v2, v[{KVA+4*q}:{KVA+4*q+3}] offset:{LDS_KV+q*1024}')
    e('s_waitcnt lgkmcnt(0)')
    e('s_barrier')
    e('s_mul_i32 s44, s14, 12288')
    e(f's_add_u32 s44, s44, {LDS_RED}')
    e('v_add_u32 v2, s44, v5')
    for src in range(4):
        for q in range(3):
            e(f'ds_read_b128 v[{128+src*12+q*4}:{128+src*12+q*4+3}], v2 offset:{src*3072+q*1024}')
    for src in range(8):
        for q in range(3):
            e(f'ds_read_b128 v[{16+src*12+q*4}:{16+src*12+q*4+3}], v5 offset:{LDS_KV+src*3072+q*1024}')
    e('s_waitcnt lgkmcnt(0)')
    for st in (4,2,1):
        for src in range(st):
            for r in range(12):
                e(f'v_add_f32 v{16+src*12+r}, v{16+src*12+r}, v{16+(src+st)*12+r}')
    for i in range(6): e(f'v_cvt_pk_bf16_f32 v{48+i}, v{16+2*i}, v{17+2*i}')
    e('v_mov_b32 v54, 0'); e('v_mov_b32 v55, 0')
    A.nop(2)
    mf(80,48,224,None)
    mf(80,52,228,80)
    for r in range(12):
        e(f'v_add_f32 v{128+r}, v{128+r}, v{140+r}')
        e(f'v_add_f32 v{152+r}, v{152+r}, v{164+r}')
    for r in range(12):
        e(f'v_add_f32 v{128+r}, v{128+r}, v{152+r}')
    e('v_lshrrev_b32 v4, 4, v233')
    e('v_mul_u32_u24 v4, 40960, v4')
    e('v_and_b32 v10, 15, v233')
    e('v_lshl_add_u32 v4, v10, 4, v4')
    e('s_mul_i32 s44, s12, 1280')
    e(f's_add_u32 s45, s44, {OF}')
    e('v_lshl_add_u32 v4, v8, 8, v4')
    def finish(base, isA, pk):
        e(f'v_mov_b32 v2, v{base+8}')
        e(f'v_mov_b32 v3, v{base+8}')
        A.nop(2)
        e('v_permlane32_swap_b32 v2, v3')
        A.nop(2)
        if isA:
            e(f'v_add_f32 v3, {f2u(1e-6):#x}, v3')
        e('v_rcp_f32 v3, v3')
        if isA:
            e('v_mov_b32 v2, v232')
        else:
            e('v_sub_f32 v2, 1.0, v232')
        e('v_mul_f32 v3, v3, v2')
        for r in range(12): e(f'v_mul_f32 v{base+r}, v{base+r}, v3')
        for i in range(4): e(f'v_cvt_pk_bf16_f32 v{pk+i}, v{base+2*i}, v{base+2*i+1}')
        o=208+(2 if isA else 0)
        for i in range(2): e(f'v_cvt_pk_bf16_f32 v{o+i}, v{base+8+2*i}, v{base+9+2*i}')
    finish(128,False,200)
    A.nop(4)
    finish(80,True,204)
    e('buffer_store_dwordx4 v[200:203], v4, s[8:11], s45 offen sc1')
    e('buffer_store_dwordx4 v[204:207], v4, s[8:11], s45 offen offset:512 sc1')
    e('s_mov_b32 exec_hi, 0')
    e('buffer_store_dwordx4 v[208:211], v4, s[8:11], s45 offen offset:1024 sc1')
    e('s_mov_b32 exec_hi, -1')
    e('s_load_dwordx4 s[20:23], s[0:1], 56')
    e('s_and_b32 s3, s2, 7')
    e('s_lshr_b32 s24, s2, 3')
    e('s_lshl_b32 s25, s3, 2')
    e('s_lshr_b32 s26, s24, 3')
    e('s_add_u32 s25, s25, s26')
    e('s_and_b32 s26, s24, 7')
    e('v_lshlrev_b32 v5, 4, v1')
    e('s_mul_i32 s27, s14, 5')
    e('s_mul_i32 s28, s26, 40')
    e('s_add_u32 s28, s28, s27')
    e('s_mul_i32 s28, s28, 5120')
    e(f's_add_u32 s28, s28, {WF}')
    WR=lambda ks,t:16+(ks*5+t)*4
    for ks in range(5):
        for t in range(5):
            if t<4:
                e(f'buffer_load_dwordx4 v[{WR(ks,t)}:{WR(ks,t)+3}], v5, s[8:11], s28 offen offset:{t*1024}')
            else:
                e('s_add_u32 s29, s28, 4096')
                e(f'buffer_load_dwordx4 v[{WR(ks,t)}:{WR(ks,t)+3}], v5, s[8:11], s29 offen')
        e('s_add_u32 s28, s28, 5120')
    e('s_waitcnt vmcnt(25)')
    e('s_barrier')
    e('s_waitcnt lgkmcnt(0)')
    srd(A,32,22,256)
    lb=A.newlabel('k2gb')
    e('s_cmp_lg_u32 s14, 0')
    e(f's_cbranch_scc1 {lb}')
    e('s_and_b32 s36, s2, 3')
    e('s_lshl_b32 s36, s36, 6')
    e('v_mov_b32 v2, 1')
    e('v_mov_b32 v3, 0')
    e('s_mov_b64 exec, 1')
    e('buffer_atomic_add v2, v3, s[32:35], s36 offen sc1')
    e('s_mov_b64 exec, 15')
    e('v_lshlrev_b32 v3, 6, v1')
    e('s_mov_b32 s37, 0')
    lp=A.newlabel('k2poll')
    A.label(lp)
    e('buffer_load_dword v2, v3, s[32:35], 0 offen sc0 sc1')
    e('s_waitcnt vmcnt(0)')
    e('v_readlane_b32 s38, v2, 0'); e('v_readlane_b32 s39, v2, 1'); e('v_readlane_b32 s40, v2, 2'); e('v_readlane_b32 s41, v2, 3')
    A.nop(3)
    e('s_add_u32 s38, s38, s39'); e('s_add_u32 s40, s40, s41'); e('s_add_u32 s38, s38, s40')
    e('s_cmp_ge_u32 s38, 256')
    lo=A.newlabel('k2out')
    e(f's_cbranch_scc1 {lo}')
    e('s_sleep 1')
    e('s_add_u32 s37, s37, 1')
    e('s_cmp_lt_u32 s37, 0x40000')
    e(f's_cbranch_scc1 {lp}')
    A.label(lo)
    e('s_mov_b64 exec, -1')
    A.label(lb)
    e('s_barrier')
    stamp_mid(A,3)
    e('s_mul_i32 s28, s25, 160')
    e('s_add_u32 s28, s28, s27')
    e('s_lshl_b32 s28, s28, 10')
    e(f's_add_u32 s28, s28, {OF}')
    for mt in range(4): e(f's_add_u32 s{36+mt}, s28, {mt*40960}')
    OR_=lambda ks,mt:116+((ks%3)*4+mt)*4
    AC=lambda mt,t:168+(mt*5+t)*4
    def oload(ks):
        for mt in range(4):
            off=ks*1024
            if off<4096:
                e(f'buffer_load_dwordx4 v[{OR_(ks,mt)}:{OR_(ks,mt)+3}], v5, s[8:11], s{36+mt} offen offset:{off} sc1')
            else:
                e(f's_add_u32 s29, s{36+mt}, 4096')
                e(f'buffer_load_dwordx4 v[{OR_(ks,mt)}:{OR_(ks,mt)+3}], v5, s[8:11], s29 offen sc1')
    for ks in range(3): oload(ks)
    waits={0:8,1:8,2:8,3:4,4:0}
    for ks in range(5):
        e(f's_waitcnt vmcnt({waits[ks]})')
        for t in range(5):
            for mt in range(4):
                a_=AC(mt,t)
                cc='0' if ks==0 else f'v[{a_}:{a_+3}]'
                e(f'v_mfma_f32_16x16x32_bf16 v[{a_}:{a_+3}], v[{WR(ks,t)}:{WR(ks,t)+3}], v[{OR_(ks,mt)}:{OR_(ks,mt)+3}], {cc}')
        if ks+3<5: oload(ks+3)
    A.nop(10)
    e('s_and_b32 s36, s14, 3')
    e('s_mul_i32 s37, s36, 20480')
    e('v_add_u32 v6, s37, v5')
    l1=A.newlabel('k2r1'); l2=A.newlabel('k2r2')
    e('s_cmp_lt_u32 s14, 4')
    e(f's_cbranch_scc1 {l1}')
    for i in range(20):
        e(f'ds_write_b128 v6, v[{168+4*i}:{168+4*i+3}] offset:{i*1024}')
    e('s_waitcnt lgkmcnt(0)')
    e('s_barrier')
    e('s_barrier')
    e('s_barrier')
    e(f's_branch {name}_fin')
    A.label(l1)
    e('s_barrier')
    for i in range(20):
        e(f'ds_read_b128 v[{16+4*i}:{16+4*i+3}], v6 offset:{i*1024}')
    e('s_waitcnt lgkmcnt(0)')
    for i in range(80): e(f'v_add_f32 v{168+i}, v{168+i}, v{16+i}')
    e('s_barrier')
    e('s_mul_i32 s37, s36, 5120')
    e('v_add_u32 v6, s37, v5')
    e('v_add_u32 v7, 40960, v6')
    for mt in range(4):
        for t in range(5):
            e(f'ds_write_b128 v{6 if mt<2 else 7}, v[{AC(mt,t)}:{AC(mt,t)+3}] offset:{(mt&1)*20480+t*1024}')
    e('s_waitcnt lgkmcnt(0)')
    e('s_barrier')
    e('s_mul_i32 s37, s36, 20480')
    e('v_add_u32 v6, s37, v5')
    for src in range(4):
        for t in range(5):
            d=16+(src*5+t)*4
            e(f'ds_read_b128 v[{d}:{d+3}], v6 offset:{src*5120+t*1024}')
    e('s_waitcnt lgkmcnt(0)')
    for i in range(20):
        e(f'v_add_f32 v{16+i}, v{16+i}, v{36+i}')
        e(f'v_add_f32 v{56+i}, v{56+i}, v{76+i}')
    for i in range(20):
        e(f'v_add_f32 v{16+i}, v{16+i}, v{56+i}')
    for i in range(10):
        e(f'v_cvt_pk_bf16_f32 v{100+i}, v{16+2*i}, v{17+2*i}')
    srd(A,32,20,2048*1280)
    e('v_and_b32 v2, 15, v1')
    e('v_lshrrev_b32 v3, 4, v1')
    e('s_lshl_b32 s37, s25, 6')
    e('s_lshl_b32 s38, s36, 4')
    e('s_add_u32 s37, s37, s38')
    e('v_add_u32 v4, s37, v2')
    e('v_mul_u32_u24 v4, 1280, v4')
    e('v_lshl_add_u32 v4, v3, 3, v4')
    e('s_mul_i32 s37, s26, 160')
    e('v_add_u32 v4, s37, v4')
    for t in range(5):
        e(f'buffer_store_dwordx2 v[{100+2*t}:{101+2*t}], v4, s[32:35], 0 offen offset:{t*32}')
    A.label(f'{name}_fin')
    stamp_end(A,1,4,14)
    A.label(f'{name}_done')
    e('s_endpgm')

def k2_desc(name='k2_kernel'):
    return f'''.amdhsa_kernel {name}
  .amdhsa_next_free_vgpr 256
  .amdhsa_next_free_sgpr 102
  .amdhsa_accum_offset 256
  .amdhsa_group_segment_fixed_size 0
  .amdhsa_kernarg_size 80
  .amdhsa_user_sgpr_count 2
  .amdhsa_user_sgpr_kernarg_segment_ptr 1
  .amdhsa_system_sgpr_workgroup_id_x 1
.end_amdhsa_kernel
'''
K2_LAUNCH=f'; @launch kernel=k2_kernel grid=(256,1,1) block=(512,1,1) lds={K2_LDS}'
```

```python
from asmlib import *
from layout import *
import struct, os
def f2u(x):
    return struct.unpack('<I', struct.pack('<f', x))[0]
STF=os.environ.get('STFLAGS','')
LDS_MAX=0
LDS_KV=8192
LDS_RED=32768
K2_LDS=LDS_RED+98304
THRESH=48.0
EXP=os.environ.get('EXP2','')
PF=int(os.environ.get('PF','0'))

def gen_k2(A, name='k2_kernel'):
    e=A.e
    A.lines.append('.p2align 8')
    A.lines.append(f'.globl {name}')
    A.lines.append(f'.type {name},@function')
    A.label(name)
    e('s_cmp_ge_u32 s2, 256')
    e(f's_cbranch_scc1 {name}_done')
    stamp_start(A)
    e('s_load_dwordx2 s[4:5], s[0:1], 72')
    e('s_and_b32 s3, s2, 7')
    e('s_lshr_b32 s6, s2, 3')
    e('s_lshl_b32 s12, s3, 2')
    e('s_lshr_b32 s7, s6, 3')
    e('s_add_u32 s12, s12, s7')
    e('s_and_b32 s13, s6, 7')
    e('v_lshrrev_b32 v2, 6, v0')
    e('v_and_b32 v1, 63, v0')
    e('s_nop 0')
    e('v_readfirstlane_b32 s14, v2')
    e('s_waitcnt lgkmcnt(0)')
    srd(A,8,4,WS_END)
    e('s_and_b32 s15, s14, 1')
    e('s_lshr_b32 s16, s14, 1')
    Q1=lambda qi:16+qi*4
    Q2=lambda qi:32+qi*4
    KF1=lambda b:48+16*b
    KF2=lambda b:52+16*b
    VF1=lambda b:56+16*b
    VF2=lambda b:60+16*b
    SB=lambda b:80+16*b
    PB=lambda b:112+8*b
    OA=lambda qi:128+16*qi
    KVA=192
    PKF=lambda b:208+4*b
    VAF=lambda b:216+4*b
    e('s_mov_b32 s18, 0x000fffff')
    e('s_mov_b32 s19, 0x000fffff')
    for qi in range(4):
        for r in range(4): e(f'v_mov_b32 v{Q2(qi)+r}, 0')
    e('v_lshlrev_b32 v5, 4, v1')
    e('v_lshlrev_b32 v6, 3, v1')
    e('v_and_b32 v7, 31, v1')
    e('v_lshrrev_b32 v8, 5, v1')
    e('v_mul_u32_u24 v9, 320, v8')
    e('v_lshl_add_u32 v9, v7, 4, v9')
    e('v_cmp_gt_u32 vcc, 32, v1')
    e('v_mov_b32 v10, 0x3f803f80')
    A.nop(2)
    e('v_cndmask_b32 v11, 0, v10, vcc')
    e('v_cmp_eq_u32 vcc, 20, v7')
    A.nop(2)
    e('v_cndmask_b32 v12, 0, v10, vcc')
    for b in range(2):
        e(f'v_mov_b32 v{KF2(b)}, 0'); e(f'v_mov_b32 v{KF2(b)+1}, 0')
        e(f'v_mov_b32 v{KF2(b)+2}, v11'); e(f'v_mov_b32 v{KF2(b)+3}, 0')
        for r in range(4):
            e(f'v_mov_b32 v{VF1(b)+r}, v12'); e(f'v_mov_b32 v{VF2(b)+r}, v12')
            e(f'v_mov_b32 v{PKF(b)+r}, 0'); e(f'v_mov_b32 v{VAF(b)+r}, v12')
    e('s_lshl_b32 s22, s12, 6')
    e('s_lshl_b32 s23, s13, 3')
    e('s_add_u32 s22, s22, s23')
    e('s_lshl_b32 s23, s15, 2')
    e('s_add_u32 s23, s22, s23')
    e('s_mul_i32 s24, s23, 1280')
    e(f's_add_u32 s24, s24, {QB}')
    for qi in range(4):
        e(f'buffer_load_dwordx4 v[{Q1(qi)}:{Q1(qi)+3}], v5, s[8:11], s24 offen offset:{qi*1280}')
    e('s_mov_b32 exec_hi, 0')
    e('s_add_u32 s25, s24, 1024')
    for qi in range(4):
        e(f'buffer_load_dwordx2 v[{Q2(qi)}:{Q2(qi)+1}], v6, s[8:11], s25 offen offset:{qi*1280}')
    e('s_mov_b32 exec_hi, -1')
    e('v_mul_u32_u24 v13, 160*128, v8')
    e('v_lshl_add_u32 v13, v7, 2, v13')
    e('s_mul_i32 s26, s12, 640')
    e(f's_add_u32 s26, s26, {NRM}')
    for g in range(5):
        e(f'buffer_load_dword v{236+g}, v13, s[8:11], s26 offen offset:{g*128}')
    e('s_add_u32 s28, s23, s16')
    e('s_mul_i32 s29, s28, 1280')
    e(f's_add_u32 s29, s29, {PA}')
    e('buffer_load_dwordx4 v[224:227], v5, s[8:11], s29 offen')
    for r in range(4): e(f'v_mov_b32 v{228+r}, 0')
    e('s_mov_b32 exec_hi, 0')
    e('buffer_load_dwordx2 v[228:229], v6, s[8:11], s29 offen offset:1024')
    e('s_mov_b32 exec_hi, -1')
    e('s_lshl_b32 s30, s15, 2')
    e('s_add_u32 s30, s30, s16')
    e('s_lshl_b32 s30, s30, 5')
    e('s_lshl_b32 s31, s13, 8')
    e('s_add_u32 s30, s30, s31')
    e('v_add_u32 v233, s30, v7')
    e('v_lshlrev_b32 v234, 2, v233')
    e(f's_mov_b32 s31, {GATE}')
    e('buffer_load_dword v232, v234, s[8:11], s31 offen')
    e('s_lshl_b32 s32, s12, 6')
    e('s_lshl_b32 s33, s16, 4')
    e('s_add_u32 s32, s32, s33')
    e('s_mul_i32 s36, s32, 1280')
    e(f's_add_u32 s34, s36, {KB}')
    e(f's_add_u32 s36, s36, {VB}')
    e('s_mov_b32 s40, s34')
    e('s_lshl_b32 s32, s12, 6')
    e('s_lshl_b32 s33, s14, 3')
    e('s_add_u32 s32, s32, s33')
    e('s_mul_i32 s37, s32, 1280')
    e(f's_add_u32 s38, s37, {VAT}')
    e(f's_add_u32 s37, s37, {PKT}')
    def loadK(b):
        e(f'buffer_load_dwordx4 v[{KF1(b)}:{KF1(b)+3}], v5, s[8:11], s34 offen')
        e('s_mov_b32 exec_hi, 0')
        e(f'buffer_load_dwordx2 v[{KF2(b)}:{KF2(b)+1}], v6, s[8:11], s34 offen offset:1024')
        e('s_mov_b32 exec_hi, -1')
        e('s_add_u32 s34, s34, 1280')
    def loadV(b):
        e('s_mov_b64 exec, s[18:19]')
        e(f'buffer_load_dwordx4 v[{VF1(b)}:{VF1(b)+3}], v9, s[8:11], s36 offen')
        e(f'buffer_load_dwordx4 v[{VF2(b)}:{VF2(b)+3}], v9, s[8:11], s36 offen offset:640')
        e('s_mov_b64 exec, -1')
        e('s_add_u32 s36, s36, 1280')
    def loadA(b):
        e('s_mov_b64 exec, s[18:19]')
        e(f'buffer_load_dwordx4 v[{PKF(b)}:{PKF(b)+3}], v9, s[8:11], s37 offen')
        e(f'buffer_load_dwordx4 v[{VAF(b)}:{VAF(b)+3}], v9, s[8:11], s38 offen')
        e('s_mov_b64 exec, -1')
        e('s_add_u32 s37, s37, 640')
        e('s_add_u32 s38, s38, 640')
    loadK(0)
    loadV(0)
    loadA(0)
    if PF:
        e('s_mul_i32 s20, s12, 64*1280')
        e('s_mul_i32 s21, s14, 80*128')
        e('s_add_u32 s20, s20, s21')
        e('v_lshlrev_b32 v13, 7, v1')
        for reg,base in enumerate((KB,VB,PKT,VAT)):
            e(f's_add_u32 s21, s20, {base}')
            e(f'buffer_load_dword v{252+reg}, v13, s[8:11], s21 offen')
            e('s_add_u32 s21, s21, 8192')
            e('s_mov_b64 exec, 0xffff')
            e(f'buffer_load_dword v{252+reg}, v13, s[8:11], s21 offen')
            e('s_mov_b64 exec, -1')
    for i in range(64): e(f'v_mov_b32 v{128+i}, 0')
    for i in range(16): e(f'v_mov_b32 v{KVA+i}, 0')
    stamp_mid(A,0)
    e('s_waitcnt vmcnt(0)')
    stamp_mid(A,1)
    for sh in (8,4,2,1):
        A.nop(2)
        for g in range(5):
            e(f'v_max_f32_dpp v{236+g}, v{236+g}, v{236+g} row_ror:{sh} row_mask:0xf bank_mask:0xf')
    A.nop(1)
    for g in range(5):
        for q in range(4):
            e(f'v_readlane_b32 s{44+g*4+q}, v{236+g}, {q*16}')
    A.nop(3)
    for g in range(5):
        e(f's_max_u32 s{44+g*4}, s{44+g*4}, s{44+g*4+1}')
        e(f's_max_u32 s{44+g*4+2}, s{44+g*4+2}, s{44+g*4+3}')
    e('v_mov_b32 v14, s44')
    e('v_mov_b32 v15, s46')
    for g in range(1,5):
        e(f'v_add_f32 v14, s{44+g*4}, v14')
        e(f'v_add_f32 v15, s{44+g*4+2}, v15')
    e('v_mul_f32 v14, v14, v15')
    e('v_sqrt_f32 v14, v14')
    e('s_nop 0')
    e(f'v_mul_f32 v14, {f2u(1.02):#x}, v14')
    e('s_nop 0')
    e('v_readfirstlane_b32 s42, v14')
    A.nop(3)
    for qi in range(4): e(f'v_mov_b32 v{236+qi}, v14')
    e(f's_cmp_gt_u32 s42, {f2u(THRESH):#x}')
    e(f's_cbranch_scc0 {name}_main')
    for qi in range(4): e(f'v_mov_b32 v{236+qi}, 0xff800000')
    e('s_mov_b32 s34, s40')
    e('s_mov_b32 s43, 0')
    A.label(f'{name}_fb')
    loadK(1)
    e('s_waitcnt vmcnt(0)')
    for qi in range(4):
        e(f'v_mfma_f32_32x32x16_bf16 v[{SB(0)}:{SB(0)+15}], v[{KF1(1)}:{KF1(1)+3}], v[{Q1(qi)}:{Q1(qi)+3}], 0')
        e(f'v_mfma_f32_32x32x16_bf16 v[{SB(0)}:{SB(0)+15}], v[{KF2(1)}:{KF2(1)+3}], v[{Q2(qi)}:{Q2(qi)+3}], v[{SB(0)}:{SB(0)+15}]')
        A.nop(14)
        for i in range(8):
            e(f'v_max3_f32 v{236+qi}, v{SB(0)+2*i}, v{SB(0)+2*i+1}, v{236+qi}')
        A.nop(2)
    e('s_add_u32 s43, s43, 1')
    e('s_cmp_lt_u32 s43, 16')
    e(f's_cbranch_scc1 {name}_fb')
    for qi in range(4):
        e(f'v_mov_b32 v2, v{236+qi}')
        e(f'v_mov_b32 v3, v{236+qi}')
        A.nop(2)
        e('v_permlane32_swap_b32 v2, v3')
        A.nop(2)
        e(f'v_max_f32 v{236+qi}, v2, v3')
    e('s_lshl_b32 s44, s14, 10')
    e('v_lshlrev_b32 v2, 2, v1')
    e('v_add_u32 v3, s44, v2')
    for qi in range(4):
        e(f'ds_write_b32 v3, v{236+qi} offset:{LDS_MAX+qi*256}')
    e('s_waitcnt lgkmcnt(0)')
    e('s_barrier')
    e('s_lshl_b32 s44, s15, 10')
    e('v_add_u32 v3, s44, v2')
    for qi in range(4):
        for kc in range(4):
            e(f'ds_read_b32 v{240+kc}, v3 offset:{LDS_MAX+kc*2048+qi*256}')
        e('s_waitcnt lgkmcnt(0)')
        e(f'v_max3_f32 v{236+qi}, v240, v241, v242')
        e(f'v_max_f32 v{236+qi}, v{236+qi}, v243')
    e('s_mov_b32 s34, s40')
    loadK(0)
    e('s_waitcnt vmcnt(0)')
    A.label(f'{name}_main')
    e('s_mov_b32 exec_hi, 0')
    for qi in range(4):
        e(f'v_sub_f32 v2, 0, v{236+qi}')
        e('v_cvt_pk_bf16_f32 v3, v2, v2')
        e('v_lshlrev_b32 v3, 16, v3')
        e('v_sub_f32 v4, v2, v3')
        e(f'v_cvt_pk_bf16_f32 v{Q2(qi)+2}, v2, v4')
    e('s_mov_b32 exec_hi, -1')
    A.nop(2)
    def mf(d,a_,b_,c_):
        cc='0' if c_ is None else f'v[{c_}:{c_+15}]'
        e(f'v_mfma_f32_32x32x16_bf16 v[{d}:{d+15}], v[{a_}:{a_+3}], v[{b_}:{b_+3}], {cc}')
    mf(SB(0),KF1(0),Q1(0),None)
    mf(SB(0),KF2(0),Q2(0),SB(0))
    A.nop(16)
    e('s_mov_b32 s43, 0')
    for r in range(8): e(f'v_mov_b32 v{PB(1)+r}, 0')
    A.nop(2)
    if 'noprio' not in EXP:
        pl=A.newlabel('k2p')
        e('s_cmp_ge_u32 s14, 4')
        e(f's_cbranch_scc0 {pl}')
        e('s_setprio 1')
        A.label(pl)
    stamp_mid(A,2)
    A.label(f'{name}_loop')
    def grp(sb,g):
        for i in range(4): e(f'v_exp_f32 v{sb+4*g+i}, v{sb+4*g+i}')
    def cv(sb,pb,g):
        e(f'v_cvt_pk_bf16_f32 v{pb+2*g}, v{sb+4*g}, v{sb+4*g+1}')
        e(f'v_cvt_pk_bf16_f32 v{pb+2*g+1}, v{sb+4*g+2}, v{sb+4*g+3}')
    for tb in range(2):
        for qi in range(4):
            n=tb*4+qi
            cur=SB(n%2); nx=SB((n+1)%2); P=PB(n%2); Pp=PB((n+1)%2)
            nb = tb if qi<3 else 1-tb
            nq=(qi+1)%4
            pq=(qi-1)%4; pbuf= tb if qi>0 else 1-tb
            if qi==3: e('s_waitcnt vmcnt(4)')
            mf(nx,KF1(nb),Q1(nq),None)
            if qi==0 and 'noK' not in EXP: loadK(1-tb)
            grp(cur,0); cv(cur,P,0)
            mf(nx,KF2(nb),Q2(nq),nx)
            grp(cur,1); cv(cur,P,1)
            mf(OA(pq),VF2(pbuf),Pp+4,OA(pq))
            if qi==1:
                e('s_waitcnt vmcnt(2)')
                if 'noA' not in EXP: mf(KVA,PKF(tb),VAF(tb),KVA)
                if 'noV' not in EXP: loadV(1-tb)
            if qi==2 and 'noA' not in EXP: loadA(1-tb)
            grp(cur,2); cv(cur,P,2)
            if qi==0: e('s_waitcnt vmcnt(4)')
            mf(OA(qi),VF1(tb),P,OA(qi))
            grp(cur,3); cv(cur,P,3)
    e('s_add_u32 s43, s43, 1')
    e('s_cmp_lt_u32 s43, 8')
    e(f's_cbranch_scc1 {name}_loop')
    A.nop(2)
    mf(OA(3),VF2(1),PB(1)+4,OA(3))
    A.nop(16)
    stamp_mid(A,3)
    e('s_waitcnt vmcnt(0)')
    for qi in range(4):
        e('s_lshl_b32 s44, s15, 2')
        e('s_add_u32 s44, s44, s16')
        e(f's_add_u32 s44, s44, {qi*8}')
        e('s_mul_i32 s44, s44, 3072')
        e(f's_add_u32 s44, s44, {LDS_RED}')
        e('v_add_u32 v2, s44, v5')
        for q in range(3):
            e(f'ds_write_b128 v2, v[{OA(qi)+4*q}:{OA(qi)+4*q+3}] offset:{q*1024}')
    e('s_mul_i32 s44, s14, 3072')
    e('v_add_u32 v2, s44, v5')
    for q in range(3):
        e(f'ds_write_b128 v2, v[{KVA+4*q}:{KVA+4*q+3}] offset:{LDS_KV+q*1024}')
    e('s_waitcnt lgkmcnt(0)')
    e('s_barrier')
    e('s_mul_i32 s44, s14, 12288')
    e(f's_add_u32 s44, s44, {LDS_RED}')
    e('v_add_u32 v2, s44, v5')
    for src in range(4):
        for q in range(3):
            e(f'ds_read_b128 v[{128+src*12+q*4}:{128+src*12+q*4+3}], v2 offset:{src*3072+q*1024}')
    for src in range(8):
        for q in range(3):
            e(f'ds_read_b128 v[{16+src*12+q*4}:{16+src*12+q*4+3}], v5 offset:{LDS_KV+src*3072+q*1024}')
    e('s_waitcnt lgkmcnt(0)')
    for st in (4,2,1):
        for src in range(st):
            for r in range(12):
                e(f'v_add_f32 v{16+src*12+r}, v{16+src*12+r}, v{16+(src+st)*12+r}')
    for i in range(6): e(f'v_cvt_pk_bf16_f32 v{48+i}, v{16+2*i}, v{17+2*i}')
    e('v_mov_b32 v54, 0'); e('v_mov_b32 v55, 0')
    A.nop(2)
    mf(80,48,224,None)
    mf(80,52,228,80)
    for r in range(12):
        e(f'v_add_f32 v{128+r}, v{128+r}, v{140+r}')
        e(f'v_add_f32 v{152+r}, v{152+r}, v{164+r}')
    for r in range(12):
        e(f'v_add_f32 v{128+r}, v{128+r}, v{152+r}')
    e('v_lshrrev_b32 v4, 4, v233')
    e('v_mul_u32_u24 v4, 40960, v4')
    e('v_and_b32 v10, 15, v233')
    e('v_lshl_add_u32 v4, v10, 4, v4')
    e('s_mul_i32 s44, s12, 1280')
    e(f's_add_u32 s45, s44, {OF}')
    e('v_lshl_add_u32 v4, v8, 8, v4')
    def finish(base, isA, pk):
        e(f'v_mov_b32 v2, v{base+8}')
        e(f'v_mov_b32 v3, v{base+8}')
        A.nop(2)
        e('v_permlane32_swap_b32 v2, v3')
        A.nop(2)
        if isA:
            e(f'v_add_f32 v3, {f2u(1e-6):#x}, v3')
        e('v_rcp_f32 v3, v3')
        if isA:
            e('v_mov_b32 v2, v232')
        else:
            e('v_sub_f32 v2, 1.0, v232')
        e('v_mul_f32 v3, v3, v2')
        for r in range(12): e(f'v_mul_f32 v{base+r}, v{base+r}, v3')
        for i in range(4): e(f'v_cvt_pk_bf16_f32 v{pk+i}, v{base+2*i}, v{base+2*i+1}')
        o=208+(2 if isA else 0)
        for i in range(2): e(f'v_cvt_pk_bf16_f32 v{o+i}, v{base+8+2*i}, v{base+9+2*i}')
    finish(128,False,200)
    A.nop(4)
    finish(80,True,204)
    e('buffer_store_dwordx4 v[200:203], v4, s[8:11], s45 offen')
    e('buffer_store_dwordx4 v[204:207], v4, s[8:11], s45 offen offset:512')
    e('s_mov_b32 exec_hi, 0')
    e('buffer_store_dwordx4 v[208:211], v4, s[8:11], s45 offen offset:1024')
    e('s_mov_b32 exec_hi, -1')
    A.label(f'{name}_fin')
    stamp_end(A,1,4,14)
    A.label(f'{name}_done')
    e('s_endpgm')

def k2_desc(name='k2_kernel'):
    return f'''.amdhsa_kernel {name}
  .amdhsa_next_free_vgpr 256
  .amdhsa_next_free_sgpr 102
  .amdhsa_accum_offset 256
  .amdhsa_group_segment_fixed_size 0
  .amdhsa_kernarg_size 80
  .amdhsa_user_sgpr_count 2
  .amdhsa_user_sgpr_kernarg_segment_ptr 1
  .amdhsa_system_sgpr_workgroup_id_x 1
.end_amdhsa_kernel
'''
K2_LAUNCH=f'; @launch kernel=k2_kernel grid=(256,1,1) block=(512,1,1) lds={K2_LDS}'
```

```python
from asmlib import *
from layout import *
import struct, os
def f2u(x):
    return struct.unpack('<I', struct.pack('<f', x))[0]
LOG2E=1.4426950408889634
STX=os.environ.get('STX','')
STF=os.environ.get('STFLAGS','')

WSZ=32768
XOFF=131072
def gen_k1(A, name='k1_kernel'):
    e=A.e
    A.lines.append('.p2align 8')
    A.lines.append(f'.globl {name}')
    A.lines.append(f'.type {name},@function')
    A.label(name)
    e('s_cmp_ge_u32 s2, 240')
    e(f's_cbranch_scc1 {name}_done')
    stamp_start(A)
    e('s_load_dwordx4 s[4:7], s[0:1], 0')
    e('s_load_dwordx2 s[8:9], s[0:1], 32')
    e('s_load_dwordx2 s[10:11], s[0:1], 48')
    e('s_load_dwordx2 s[12:13], s[0:1], 72')
    e('s_and_b32 s3, s2, 7')
    e('s_lshr_b32 s19, s2, 3')
    e('s_mul_i32 s3, s3, 30')
    e('s_add_u32 s3, s3, s19')
    e('s_cmp_ge_u32 s3, 120')
    e('s_cselect_b32 s14, 8, 0')
    e('s_cselect_b32 s19, 120, 0')
    e('s_sub_u32 s3, s3, s19')
    e('s_lshr_b32 s15, s3, 3')
    e('s_and_b32 s19, s3, 7')
    e('s_add_u32 s14, s14, s19')
    e('v_lshrrev_b32 v2, 6, v0')
    e('v_and_b32 v1, 63, v0')
    e('s_nop 0')
    e('v_readfirstlane_b32 s18, v2')
    e('s_waitcnt lgkmcnt(0)')
    srd(A,20,4,2048*1280)
    srd(A,24,6,640*3840)
    srd(A,36,8,640*3840)
    srd(A,28,12,WS_END)
    srd(A,32,10,1280)
    e('s_lshr_b32 s16, s18, 2')
    e('s_and_b32 s17, s18, 3')
    e('s_cmp_ge_u32 s15, 5')
    e('s_cselect_b32 s40, 1, 0')
    e('s_cmp_ge_u32 s15, 10')
    e('s_cselect_b32 s40, 2, s40')
    e('s_mul_i32 s41, s40, 5')
    e('s_sub_u32 s41, s15, s41')
    e('s_lshl_b32 s42, s14, 7')
    e('s_lshl_b32 s43, s15, 4')
    e('s_add_u32 s42, s42, s43')
    e('s_lshl_b32 s43, s18, 1')
    e('s_add_u32 s42, s42, s43')
    e('s_mul_i32 s43, s42, 1280')
    e('v_lshlrev_b32 v5, 2, v1')
    e('s_cmp_ge_u32 s18, 8')
    e(f's_cbranch_scc0 {name}_compute')
    if 'noload' in os.environ.get('EXP',''): e(f's_branch {name}_fin')
    e('s_sub_u32 s44, s18, 8')
    TOUCH=int(os.environ.get('TOUCH','1'))
    e('v_subrev_u32 v7, 512, v0')
    e('v_mov_b32 v118, v0')
    def do_touch():
        e('v_subrev_u32 v119, 512, v118')
        e('v_lshlrev_b32 v117, 7, v119')
        e('s_mul_i32 s50, s2, 10240')
        e('s_mul_i32 s51, s2, 11264')
        e('v_mov_b32 v116, 0x7ffffff0')
        e('v_cmp_gt_u32 vcc, 80, v119')
        A.nop(2)
        e('v_cndmask_b32 v118, v116, v117, vcc')
        e('buffer_load_dword v126, v118, s[24:27], s50 offen')
        e('buffer_load_dword v126, v118, s[36:39], s50 offen')
        e('v_cmp_gt_u32 vcc, 88, v119')
        A.nop(2)
        e('v_cndmask_b32 v118, v116, v117, vcc')
        e('buffer_load_dword v127, v118, s[20:23], s51 offen')
    if TOUCH==1:
        do_touch(); log0=1
    e('v_lshrrev_b32 v6, 4, v1')
    e('v_and_b32 v7, 15, v1')
    e('s_lshr_b32 s45, s44, 2')
    e('s_lshl_b32 s45, s45, 5')
    e('s_and_b32 s46, s44, 1')
    e('s_lshl_b32 s46, s46, 4')
    e('s_add_u32 s45, s45, s46')
    e('s_bfe_u32 s46, s44, 0x10001')
    e('s_lshl_b32 s46, s46, 2')
    e('s_add_u32 s45, s45, s46')
    e('s_lshl_b32 s46, s15, 8')
    e('v_add_u32 v8, s45, v6')
    e('v_mul_u32_u24 v8, 3840, v8')
    e('v_add_u32 v8, s46, v8')
    e('v_lshlrev_b32 v9, 1, v6')
    e('v_xor_b32 v9, v9, v7')
    e('v_lshl_add_u32 v120, v9, 4, v8')
    e('v_xor_b32 v9, 8, v9')
    e('v_lshl_add_u32 v121, v9, 4, v8')
    e('v_lshrrev_b32 v6, 3, v1')
    e('v_and_b32 v7, 7, v1')
    e('s_lshl_b32 s45, s14, 7')
    e('s_lshl_b32 s46, s44, 4')
    e('s_add_u32 s45, s45, s46')
    e('v_add_u32 v8, s45, v6')
    e('v_mul_u32_u24 v8, 1280, v8')
    e('v_lshl_add_u32 v122, v7, 4, v8')
    e('v_lshrrev_b32 v9, 1, v6')
    e('v_xor_b32 v9, v9, v7')
    e('s_lshl_b32 s46, s44, 11')
    e(f's_add_u32 s46, s46, {XOFF}')
    e('v_lshlrev_b32 v8, 7, v6')
    e('v_add_u32 v8, s46, v8')
    e('v_lshl_add_u32 v123, v9, 4, v8')
    e('v_xor_b32 v9, 4, v9')
    e('v_lshl_add_u32 v124, v9, 4, v8')
    e('s_lshl_b32 s46, s44, 11')
    e('s_mov_b32 s60, 0'); e('s_mov_b32 s61, 10240')
    e('v_mov_b32 v125, v1')
    XS=lambda c,i:(c*2+i)*4
    log=[]
    def Lw(c):
        for m,sr in enumerate((24,36)):
            for i in range(2):
                e(f's_mov_b32 s47, {c*245760+i*30720}')
                e(f's_add_u32 m0, s46, {(c%4)*WSZ+m*16384+i*1024}')
                e('s_nop 0')
                if 'nodma' in os.environ.get('EXP',''): e(f'buffer_load_dword v126, v{120+i}, s[{sr}:{sr+3}], s47 offen')
                else: e(f'buffer_load_dwordx4 v{120+i}, s[{sr}:{sr+3}], s47 offen lds')
                log.append(('W',c))
    def Lx(c):
        for i in range(2):
            e(f'buffer_load_dwordx4 v[{XS(c,i)}:{XS(c,i)+3}], v122, s[20:23], s{60+i} offen offset:{c*128}'); log.append(('x',c))
    def Lsync(c):
        last=max(i for i,t in enumerate(log) if t in (('x',c),('W',c)))
        if STAMP:
            e('s_memtime s[78:79]'); e('s_waitcnt lgkmcnt(0)')
        e(f's_waitcnt vmcnt({len(log)-1-last})')
        if STAMP:
            e('s_memtime s[80:81]'); e('s_waitcnt lgkmcnt(0)')
            e('s_sub_u32 s82, s80, s78')
            if c==0: e('s_mov_b32 s74, 0')
            else: e('s_add_u32 s74, s74, s82')
        for i in range(2):
            if 'nodsw' in os.environ.get('EXP',''): continue
            e(f'ds_write_b128 v{123+i}, v[{XS(c,i)}:{XS(c,i)+3}] offset:{(c%2)*16384+i*1024}')
        e('s_waitcnt lgkmcnt(0)')
        if STAMP:
            e('s_memtime s[78:79]'); e('s_waitcnt lgkmcnt(0)')
        if 'free' not in os.environ.get('EXP',''): e('s_barrier')
        if STAMP:
            e('s_memtime s[80:81]'); e('s_waitcnt lgkmcnt(0)')
            e('s_sub_u32 s82, s80, s78')
            if c==0: e('s_mov_b32 s76, 0')
            else: e('s_add_u32 s76, s76, s82')
            e('s_mov_b32 s75, 0'); e('s_mov_b32 s77, 0')
    sched={-1:[('x',0),('W',0),('x',1),('W',1),('x',2),('W',2)],0:[('x',3),('W',3),('x',4),('x',5)],1:[('W',4),('x',6),('x',7)],2:[('W',5),('x',8),('x',9)],3:[('W',6)],4:[('W',7)],5:[('W',8)],6:[('W',9)]}
    for c in range(-1,10):
        if c>=0: Lsync(c)
        for k_,c_ in sched.get(c,[]):
            (Lw if k_=='W' else Lx)(c_)
            if TOUCH==2 and (k_,c_)==('W',1):
                do_touch()
                log.extend([('t',0)]*3)
    e('s_load_dwordx2 s[48:49], s[0:1], 16')
    e('s_load_dwordx2 s[50:51], s[0:1], 40')
    e('s_lshl_b32 s52, s2, 3')
    e('s_add_u32 s52, s52, s44')
    e('s_mul_i32 s53, s52, 5243')
    e('s_lshr_b32 s53, s53, 20')
    e('s_mul_i32 s54, s53, 200')
    e('s_sub_u32 s54, s52, s54')
    e('s_mul_i32 s55, s54, 52429')
    e('s_lshr_b32 s55, s55, 18')
    e('s_mul_i32 s56, s55, 5')
    e('s_sub_u32 s56, s54, s56')
    e('s_waitcnt lgkmcnt(0)')
    srd(A,64,48,640*1280)
    srd(A,60,50,640*1280)
    e('v_and_b32 v2, 15, v125')
    e('v_lshrrev_b32 v3, 4, v125')
    e('s_lshl_b32 s57, s55, 2')
    e('v_add_u32 v3, s57, v3')
    e('v_mul_u32_u24 v6, 205, v3')
    e('v_lshrrev_b32 v6, 10, v6')
    e('v_mul_u32_u24 v7, 5, v6')
    e('v_sub_u32 v7, v3, v7')
    e('v_mul_u32_u24 v6, 20, v6')
    e('v_and_b32 v8, 1, v7')
    e('v_lshlrev_b32 v8, 2, v8')
    e('v_cmp_eq_u32 vcc, 4, v7')
    e('v_mov_b32 v9, 16')
    A.nop(1)
    e('v_cndmask_b32 v8, v8, v9, vcc')
    e('v_add_u32 v6, v6, v8')
    e('v_mov_b32 v9, 8')
    e('v_cndmask_b32 v9, v9, 0, vcc')
    e('s_mul_i32 s57, s53, 160')
    e('s_lshl_b32 s58, s56, 5')
    e('s_add_u32 s57, s57, s58')
    e('v_lshlrev_b32 v10, 1, v2')
    e('v_add_u32 v10, s57, v10')
    e('v_mov_b32 v11, 0x7ffffff0')
    labw=A.newlabel('k1now')
    e('s_cmp_ge_u32 s52, 1600')
    e(f's_cbranch_scc1 {labw}')
    for half in range(2):
        if half==0: e('v_mov_b32 v12, v6')
        else: e('v_add_u32 v12, v6, v9')
        e('v_mul_u32_u24 v12, 1280, v12')
        e('v_add_u32 v12, v12, v10')
        e('v_cmp_gt_u32 vcc, 2, v7')
        if half==0:
            e('v_cmp_eq_u32 s[58:59], 4, v7')
            e('s_or_b64 vcc, vcc, s[58:59]')
        A.nop(2)
        e('v_cndmask_b32 v13, v11, v12, vcc')
        e('v_cndmask_b32 v14, v12, v11, vcc')
        for j in range(4):
            e(f'buffer_load_ushort v{40+half*4+j}, v13, s[60:63], 0 offen offset:{j*1280}')
            e(f'buffer_load_ushort v{48+half*4+j}, v14, s[64:67], 0 offen offset:{j*1280}')
    e('s_waitcnt vmcnt(0)')
    for j in range(8): e(f'v_or_b32 v{40+j}, v{40+j}, v{48+j}')
    for j in range(4):
        e(f'v_lshl_or_b32 v{40+j}, v{41+2*j}, 16, v{40+2*j}')
    e('v_lshlrev_b32 v5, 4, v125')
    e('s_lshl_b32 s53, s52, 10')
    e(f's_add_u32 s53, s53, {WF}')
    e(f'buffer_store_dwordx4 v[40:43], v5, s[28:31], s53 offen{STF}')
    A.label(labw)
    e('s_cmp_ge_u32 s15, 8')
    e(f's_cbranch_scc1 {name}_fin')
    e('s_lshl_b32 s42, s14, 7')
    e('s_lshl_b32 s43, s15, 4')
    e('s_add_u32 s42, s42, s43')
    e('s_lshl_b32 s43, s44, 1')
    e('s_add_u32 s42, s42, s43')
    e('s_mul_i32 s43, s42, 1280')
    e('v_lshlrev_b32 v5, 2, v125')
    for i in range(5):
        e(f'buffer_load_dword v{100+i}, v5, s[32:35], 0 offen offset:{i*256}')
    for rr in range(2):
        for i in range(5):
            e(f'buffer_load_dword v{105+rr*5+i}, v5, s[20:23], s43 offen offset:{rr*1280+i*256}')
    e('s_waitcnt vmcnt(0)')
    e('s_mov_b32 s55, 0xffff0000')
    for rr in range(2):
        d=20+rr
        first=True
        for i in range(5):
            g=100+i; x=105+rr*5+i
            e(f'v_lshlrev_b32 v30, 16, v{g}')
            e(f'v_lshlrev_b32 v31, 16, v{x}')
            if first: e(f'v_mul_f32 v{d}, v30, v31')
            else: e(f'v_fmac_f32 v{d}, v30, v31')
            first=False
            e(f'v_and_b32 v30, s55, v{g}')
            e(f'v_and_b32 v31, s55, v{x}')
            e(f'v_fmac_f32 v{d}, v30, v31')
    for sh in (8,4,2,1):
        A.nop(2)
        for rr in range(2):
            d=20+rr
            e(f'v_add_f32_dpp v{d}, v{d}, v{d} row_ror:{sh} row_mask:0xf bank_mask:0xf')
    A.nop(1)
    for rr in range(2):
        for q in range(4):
            e(f'v_readlane_b32 s{46+rr*4+q}, v{20+rr}, {q*16}')
    A.nop(2)
    for rr in range(2):
        d=20+rr
        e(f'v_mov_b32 v{d}, s{46+rr*4}')
        for q in range(1,4):
            e(f'v_add_f32 v{d}, s{46+rr*4+q}, v{d}')
    e('v_cmp_eq_u32 vcc, 1, v125')
    A.nop(2)
    e('v_cndmask_b32 v20, v20, v21, vcc')
    e(f's_mov_b32 s52, {f2u(LOG2E):#x}')
    e('v_mul_f32 v20, s52, v20')
    e('v_sub_f32 v20, 0, v20')
    e('v_exp_f32 v20, v20')
    e('s_nop 0')
    e('v_add_f32 v20, 1.0, v20')
    e('v_rcp_f32 v20, v20')
    e('v_add_u32 v22, s42, v125')
    e('v_lshlrev_b32 v22, 2, v22')
    e(f's_mov_b32 s55, {GATE}')
    e('s_mov_b64 exec, 3')
    e(f'buffer_store_dword v20, v22, s[28:31], s55 offen{STF}')
    e('s_mov_b64 exec, -1')
    e(f's_branch {name}_fin')
    A.label(f'{name}_compute')
    e('v_and_b32 v2, 15, v1')
    e('v_lshrrev_b32 v3, 4, v1')
    e('v_lshrrev_b32 v4, 1, v2')
    e('v_xor_b32 v4, v4, v3')
    e('s_lshl_b32 s44, s16, 13')
    e(f's_add_u32 s44, s44, {XOFF}')
    e('v_lshlrev_b32 v6, 7, v2')
    e('v_add_u32 v6, s44, v6')
    e('v_lshl_add_u32 v14, v4, 4, v6')
    e('v_xor_b32 v4, 4, v4')
    e('v_lshl_add_u32 v15, v4, 4, v6')
    e('v_lshrrev_b32 v4, 2, v1')
    e('v_and_b32 v6, 7, v4')
    e('v_lshlrev_b32 v7, 8, v4')
    e('v_and_b32 v8, 3, v1')
    e('v_lshl_add_u32 v7, v8, 3, v7')
    e('s_lshr_b32 s44, s17, 1')
    e('s_lshl_b32 s44, s44, 14')
    e('v_add_u32 v7, s44, v7')
    e('s_and_b32 s44, s17, 1')
    e('s_lshl_b32 s44, s44, 2')
    for tt in range(4):
        e(f's_add_u32 s45, s44, {tt}')
        e('v_xor_b32 v8, s45, v6')
        e(f'v_lshl_add_u32 v{16+tt}, v8, 5, v7')
    e('s_lshr_b32 s49, s17, 1')
    e('s_cmp_eq_u32 s40, 0')
    e(f's_cbranch_scc1 {name}_WX')
    e('s_cmp_eq_u32 s40, 1')
    e('s_cselect_b32 s50, s49, 0')
    e('s_cmp_eq_u32 s50, 1')
    e(f's_cbranch_scc1 {name}_WX')

    XF=lambda mt:20+mt*4
    WFr=lambda s_,tt:36+s_*16+tt*4
    ACC=lambda mt,tt:68-4+ (mt*4+tt)*4 + 0 if False else 64+ (mt*4+tt)*4+4
    ACC=lambda mt,tt:64+(mt*4+tt)*4
    WFr=lambda s_,tt:32+s_*16+tt*4
    XF=lambda mt:16+mt*4 if False else 112
    XF=lambda mt:(0,0,0,0)[mt]
    XF=lambda mt:16+mt*4
    def mainloop(wx):
        EXP=os.environ.get('EXP','')
        e('v_mov_b32 v8, v14'); e('v_mov_b32 v9, v15')
        for i in range(4): e(f'v_mov_b32 v{10+i}, v{16+i}')
        def xread(c,ks2,mt):
            if 'noxr' in EXP and mt>=2: return
            e(f'ds_read_b128 v[{XF(mt)}:{XF(mt)+3}], v{8+ks2} offset:{(c%2)*16384+mt*2048}')
        def wread(c,ks2,s_):
            for tt in range(4):
                if 'nowr' in EXP and tt>=2: continue
                for hf in range(2):
                    e(f'ds_read_b64_tr_b16 v[{WFr(s_,tt)+2*hf}:{WFr(s_,tt)+2*hf+1}], v{10+tt} offset:{(c%2)*WSZ+(ks2*32+hf*16)*256}')
        def sync(c):
            e('s_waitcnt lgkmcnt(0)')
            if STAMP:
                e('s_memtime s[78:79]'); e('s_waitcnt lgkmcnt(0)')
            if 'noload' not in EXP and 'free' not in EXP: e('s_barrier')
            if STAMP:
                e('s_memtime s[80:81]'); e('s_waitcnt lgkmcnt(0)')
                e('s_sub_u32 s80, s80, s78')
                if c==0: e('s_mov_b32 s74, 0')
                else: e('s_add_u32 s74, s74, s80')
                e('s_mov_b32 s75, 0')
            if c>0 and c%2==0:
                d=2*WSZ if (c%4)==2 else -2*WSZ
                for i in range(4): e(f'v_add_u32 v{10+i}, {d}, v{10+i}')
        sync(0)
        stamp_mid(A,0)
        wread(0,0,0)
        for mt in range(4): xread(0,0,mt)
        for st in range(20):
            c=st//2; ks2=st%2; s_=st%2
            nc,nk=(c,1) if ks2==0 else (c+1,0)
            last=(st==19)
            if ks2==1 and not last: sync(c+1)
            if not last: wread(nc,nk,1-s_)
            for mt in range(4):
                e(f's_waitcnt lgkmcnt({11 if not last else 3-mt})')
                if 'rr' in EXP: e('s_setprio 1')
                for tt in range(4):
                    a_=ACC(mt,tt)
                    cc='0' if st==0 else f'v[{a_}:{a_+3}]'
                    xr=f'v[{XF(mt)}:{XF(mt)+3}]'; wr=f'v[{WFr(s_,tt)}:{WFr(s_,tt)+3}]'
                    if wx: e(f'v_mfma_f32_16x16x32_bf16 v[{a_}:{a_+3}], {wr}, {xr}, {cc}')
                    else:  e(f'v_mfma_f32_16x16x32_bf16 v[{a_}:{a_+3}], {xr}, {wr}, {cc}')
                if 'rr' in EXP: e('s_setprio 0')
                if not last: xread(nc,nk,mt)
        A.nop(10)
        stamp_mid(A,1)

    def consts():
        e(f's_mov_b32 s52, {f2u(LOG2E):#x}')
        e(f's_mov_b32 s53, {f2u(LOG2E):#x}')
        e(f's_mov_b32 s66, {f2u(1e-6):#x}')
        e(f's_mov_b32 s67, {f2u(1e-6):#x}')
        e(f's_mov_b32 s54, {f2u(QSCALE):#x}')
        e(f's_mov_b32 s68, {f2u(QSCALE):#x}')
        e(f's_mov_b32 s69, {f2u(QSCALE):#x}')
    def phi(regs,tmp):
        n=len(regs)
        for i in range(0,n,2):
            e(f'v_pk_mul_f32 v[{tmp+i}:{tmp+i+1}], v[{regs[i]}:{regs[i]+1}], s[52:53]')
        for i in range(n): e(f'v_exp_f32_e64 v{tmp+i}, v{tmp+i} clamp')
        for i,r in enumerate(regs): e(f'v_max_f32 v{r}, 0, v{r}')
        for i in range(0,n,2):
            e(f'v_pk_add_f32 v[{tmp+i}:{tmp+i+1}], v[{tmp+i}:{tmp+i+1}], s[66:67]')
        for i in range(0,n,2):
            e(f'v_pk_add_f32 v[{regs[i]}:{regs[i]+1}], v[{regs[i]}:{regs[i]+1}], v[{tmp+i}:{tmp+i+1}]')
    def gate_epilogue():
        lab=A.newlabel('k1ng')
        e('s_waitcnt vmcnt(0)')
        e('s_cmp_ge_u32 s15, 8')
        e(f's_cbranch_scc1 {lab}')
        e('s_mov_b32 s55, 0xffff0000')
        for rr in range(2):
            d=20+rr
            first=True
            for i in range(5):
                g=160+i; x=165+rr*5+i
                e(f'v_lshlrev_b32 v22, 16, v{g}')
                e(f'v_lshlrev_b32 v23, 16, v{x}')
                if first: e(f'v_mul_f32 v{d}, v22, v23')
                else: e(f'v_fmac_f32 v{d}, v22, v23')
                first=False
                e(f'v_and_b32 v22, s55, v{g}')
                e(f'v_and_b32 v23, s55, v{x}')
                e(f'v_fmac_f32 v{d}, v22, v23')
        for sh in (8,4,2,1):
            A.nop(2)
            for rr in range(2):
                d=20+rr
                e(f'v_add_f32_dpp v{d}, v{d}, v{d} row_ror:{sh} row_mask:0xf bank_mask:0xf')
        A.nop(1)
        for rr in range(2):
            for q in range(4):
                e(f'v_readlane_b32 s{56+rr*4+q}, v{20+rr}, {q*16}')
        A.nop(2)
        for rr in range(2):
            d=20+rr
            e(f'v_mov_b32 v{d}, s{56+rr*4}')
            for q in range(1,4):
                e(f'v_add_f32 v{d}, s{56+rr*4+q}, v{d}')
            e(f'v_mul_f32 v{d}, s52, v{d}')
            e(f'v_sub_f32 v{d}, 0, v{d}')
            e(f'v_exp_f32 v{d}, v{d}')
            e('s_nop 0')
            e(f'v_add_f32 v{d}, 1.0, v{d}')
            e(f'v_rcp_f32 v{d}, v{d}')
        e('s_nop 0')
        e('v_cmp_eq_u32 vcc, 1, v1')
        A.nop(2)
        e('v_cndmask_b32 v20, v20, v21, vcc')
        e('v_add_u32 v22, s42, v1')
        e('v_lshlrev_b32 v22, 2, v22')
        e(f's_mov_b32 s55, {GATE}')
        e('s_mov_b64 exec, 3')
        e(f'buffer_store_dword v20, v22, s[28:31], s55 offen{STF}')
        e('s_mov_b64 exec, -1')
        A.label(lab)

    def wx_epi(kind):
        base={'Aq':PA,'Bq':QB,'Bk':KB}[kind]
        allregs=[ACC(mt,tt)+r for mt in range(4) for tt in range(4) for r in range(4)]
        if kind=='Aq':
            for h in range(4): phi(allregs[16*h:16*h+16],32)
        if kind=='Bq':
            for r in allregs[::2]: e(f'v_pk_mul_f32 v[{r}:{r+1}], v[{r}:{r+1}], s[68:69]')
        e('s_lshl_b32 s56, s41, 5')
        e('s_and_b32 s57, s17, 1')
        e('s_lshl_b32 s57, s57, 4')
        e('s_add_u32 s56, s56, s57')
        e('v_add_u32 v4, s56, v3')
        e('s_lshl_b32 s57, s14, 2')
        e('s_lshl_b32 s58, s16, 1')
        e('s_add_u32 s57, s57, s58')
        if kind=='Bk':
            e('v_and_b32 v5, 8, v2')
            e('v_lshlrev_b32 v5, 1, v5')
            e('v_and_b32 v6, 7, v2')
            e('v_add_u32 v5, v5, v6')
            dodd=8
        else:
            e('v_mov_b32 v5, v2')
            dodd=16
        e(f's_mov_b32 s59, {base}')
        for tt in range(4):
            e(f'v_add_u32 v6, {4*tt}, v4')
            e('v_mul_u32_u24 v7, 205, v6')
            e('v_lshrrev_b32 v7, 10, v7')
            e('v_mul_u32_u24 v8, 5, v7')
            e('v_sub_u32 v8, v6, v8')
            e('v_lshlrev_b32 v9, 6, v7')
            e('v_add_u32 v9, s57, v9')
            e('v_mul_u32_u24 v9, 1280, v9')
            if kind=='Aq':
                e('v_and_b32 v10, 1, v8')
                e('v_lshrrev_b32 v11, 1, v8')
            else:
                e('v_lshrrev_b32 v10, 1, v8')
                e('v_and_b32 v11, 1, v8')
            e('v_lshlrev_b32 v10, 9, v10')
            e('v_lshl_add_u32 v10, v11, 3, v10')
            e('v_lshl_add_u32 v10, v5, 4, v10')
            e('v_lshlrev_b32 v11, 3, v5')
            e('v_add_u32 v11, 1024, v11')
            e('v_cmp_eq_u32 vcc, 4, v8')
            A.nop(2)
            e('v_cndmask_b32 v12, v10, v11, vcc')
            e(f'v_add_u32 v10, {dodd*16}, v10')
            e(f'v_add_u32 v11, {dodd*8}, v11')
            e('v_cndmask_b32 v13, v10, v11, vcc')
            e('v_add_u32 v12, v12, v9')
            e('v_add_u32 v13, v13, v9')
            for mt in range(4):
                a_=ACC(mt,tt)
                pk=32+(tt*4+mt)*2
                e(f'v_cvt_pk_bf16_f32 v{pk}, v{a_}, v{a_+1}')
                e(f'v_cvt_pk_bf16_f32 v{pk+1}, v{a_+2}, v{a_+3}')
                e(f'buffer_store_dwordx2 v[{pk}:{pk+1}], v{12+(mt&1)}, s[28:31], s59 offen offset:{(mt>>1)*1280}{STF}')
            if kind!='Aq':
                for mt in range(4):
                    a_=ACC(mt,tt)
                    e(f'v_mul_f32 v{14+mt}, v{a_}, v{a_}')
                    for r in range(1,4): e(f'v_fmac_f32 v{14+mt}, v{a_+r}, v{a_+r}')
                e('v_max_f32 v14, v14, v15')
                e('v_max3_f32 v14, v16, v17, v14')
                for sh in (8,4,2,1):
                    A.nop(2)
                    e(f'v_max_f32_dpp v14, v14, v14 row_ror:{sh} row_mask:0xf bank_mask:0xf')
                e('s_lshl_b32 s60, s14, 1')
                e('s_add_u32 s60, s60, s16')
                e('s_lshl_b32 s60, s60, 2')
                e(f's_add_u32 s60, s60, {NRM+(160*32*4 if kind=="Bk" else 0)}')
                e('v_lshlrev_b32 v15, 7, v6')
                e('s_mov_b32 exec_lo, 0x00010001')
                e('s_mov_b32 exec_hi, 0x00010001')
                e(f'buffer_store_dword v14, v15, s[28:31], s60 offen{STF}')
                e('s_mov_b64 exec, -1')
                A.nop(1)

    mainloop(False)
    consts()
    e('v_and_b32 v2, 15, v1')
    e('v_lshrrev_b32 v3, 4, v1')
    e(f's_mov_b32 s59, {PKT}')
    e('s_cmp_eq_u32 s40, 2')
    e(f's_cselect_b32 s59, {VAT}, s59')
    e('s_lshl_b32 s60, s40, 1')
    e('s_add_u32 s60, s60, s49')
    e('s_cmp_eq_u32 s60, 5')
    e(f's_cselect_b32 s59, {VB}, s59')
    lab=A.newlabel('k1nophi')
    e('s_cmp_eq_u32 s40, 1')
    e(f's_cbranch_scc0 {lab}')
    allregs=[ACC(mt,tt)+r for mt in range(4) for tt in range(4) for r in range(4)]
    for h in range(4): phi(allregs[16*h:16*h+16],32)
    A.label(lab)
    e('s_lshl_b32 s56, s41, 7')
    e('s_and_b32 s57, s17, 1')
    e('s_lshl_b32 s57, s57, 6')
    e('s_add_u32 s56, s56, s57')
    e('v_add_u32 v4, s56, v2')
    e('s_lshl_b32 s57, s14, 2')
    e('s_lshl_b32 s58, s16, 1')
    e('s_add_u32 s57, s57, s58')
    e('v_mul_u32_u24 v5, 320, v3')
    for tt in range(4):
        e(f'v_add_u32 v6, {16*tt}, v4')
        e('v_mul_u32_u24 v7, 3277, v6')
        e('v_lshrrev_b32 v7, 16, v7')
        e('v_mul_u32_u24 v8, 20, v7')
        e('v_sub_u32 v8, v6, v8')
        e('v_lshlrev_b32 v9, 6, v7')
        e('v_add_u32 v9, s57, v9')
        e('v_mul_u32_u24 v9, 1280, v9')
        e('v_add_u32 v9, v9, v5')
        e('v_lshl_add_u32 v9, v8, 4, v9')
        for up in range(2):
            pk=32+(tt*2+up)*4
            for a2 in range(2):
                a_=ACC(2*up+a2,tt)
                e(f'v_cvt_pk_bf16_f32 v{pk+2*a2}, v{a_}, v{a_+1}')
                e(f'v_cvt_pk_bf16_f32 v{pk+2*a2+1}, v{a_+2}, v{a_+3}')
            e(f'buffer_store_dwordx4 v[{pk}:{pk+3}], v9, s[28:31], s59 offen offset:{up*1280}{STX}')
        A.nop(1)
    e(f's_branch {name}_fin')

    A.label(f'{name}_WX')
    mainloop(True)
    consts()
    e('v_and_b32 v2, 15, v1')
    e('v_lshrrev_b32 v3, 4, v1')
    e('s_cmp_eq_u32 s40, 1')
    e(f's_cbranch_scc1 {name}_Bk')
    e('s_cmp_eq_u32 s49, 1')
    e(f's_cbranch_scc1 {name}_Bq')
    wx_epi('Aq')
    e(f's_branch {name}_fin')
    A.label(f'{name}_Bq')
    wx_epi('Bq')
    e(f's_branch {name}_fin')
    A.label(f'{name}_Bk')
    wx_epi('Bk')
    e(f's_branch {name}_fin')
    A.label(f'{name}_fin')
    stamp_end(A,0,12,18)
    A.label(f'{name}_done')
    e('s_endpgm')

def k1_desc(name='k1_kernel'):
    return f'''.amdhsa_kernel {name}
  .amdhsa_next_free_vgpr 128
  .amdhsa_next_free_sgpr 102
  .amdhsa_accum_offset 128
  .amdhsa_group_segment_fixed_size 0
  .amdhsa_kernarg_size 80
  .amdhsa_user_sgpr_count 2
  .amdhsa_user_sgpr_kernarg_segment_ptr 1
  .amdhsa_system_sgpr_workgroup_id_x 1
.end_amdhsa_kernel
'''
K1_LAUNCH='; @launch kernel=k1_kernel grid=(240,1,1) block=(1024,1,1) lds=163840'
```

```python
import sys
sys.path.insert(0,'dev')
from asmlib import *
import k1
def main(out, which=('k1',)):
    hdr=open('gated_mix__linear_attn_block__mha_block__prompt.s.ref').read().split('\n')
    head=[l for l in hdr if l.startswith(';') and '@launch' not in l and 'TODO' not in l]
    head=head[:13]
    A=Asm()
    launches=[]; descs=[]
    import importlib, os
    mods={}
    for kk in ('k1','k2','k3'):
        mods[kk]=importlib.import_module(os.environ.get('MOD_'+kk.upper(),kk))
    for w in which:
        m=mods[w]
        getattr(m,'gen_'+w)(A)
        launches.append(getattr(m,w.upper()+'_LAUNCH'))
        descs.append(getattr(m,w+'_desc')())
    txt='\n'.join(head)+'\n'+'\n'.join(launches)+'\n'
    txt+='.amdgcn_target "amdgcn-amd-amdhsa--gfx950"\n.text\n'
    txt+=A.text()
    txt+='.section .rodata,"a"\n'
    for d in descs:
        txt+='.p2align 6\n'+d
    open(out,'w').write(txt)
if __name__=='__main__':
    out=sys.argv[1]
    which=sys.argv[2].split(',')
    main(out,which)
```

```python
from asmlib import *
from layout import *
import struct, os
def f2u(x):
    return struct.unpack('<I', struct.pack('<f', x))[0]
LOG2E=1.4426950408889634
STX=os.environ.get('STX','')
STF=os.environ.get('STFLAGS','')

WSZ=32768
XOFF=131072
def gen_k1(A, name='k1_kernel'):
    e=A.e
    A.lines.append('.p2align 8')
    A.lines.append(f'.globl {name}')
    A.lines.append(f'.type {name},@function')
    A.label(name)
    e('s_cmp_ge_u32 s2, 240')
    e(f's_cbranch_scc1 {name}_done')
    stamp_start(A)
    e('s_load_dwordx4 s[4:7], s[0:1], 0')
    e('s_load_dwordx2 s[8:9], s[0:1], 32')
    e('s_load_dwordx2 s[10:11], s[0:1], 48')
    e('s_load_dwordx2 s[12:13], s[0:1], 72')
    e('s_and_b32 s3, s2, 7')
    e('s_lshr_b32 s19, s2, 3')
    e('s_mul_i32 s3, s3, 30')
    e('s_add_u32 s3, s3, s19')
    e('s_cmp_ge_u32 s3, 120')
    e('s_cselect_b32 s14, 8, 0')
    e('s_cselect_b32 s19, 120, 0')
    e('s_sub_u32 s3, s3, s19')
    e('s_lshr_b32 s15, s3, 3')
    e('s_and_b32 s19, s3, 7')
    e('s_add_u32 s14, s14, s19')
    e('v_lshrrev_b32 v2, 6, v0')
    e('v_and_b32 v1, 63, v0')
    e('s_nop 0')
    e('v_readfirstlane_b32 s18, v2')
    e('s_waitcnt lgkmcnt(0)')
    srd(A,20,4,2048*1280)
    srd(A,24,6,640*3840)
    srd(A,36,8,640*3840)
    srd(A,28,12,WS_END)
    srd(A,32,10,1280)
    e('s_lshr_b32 s16, s18, 2')
    e('s_and_b32 s17, s18, 3')
    e('s_cmp_ge_u32 s15, 5')
    e('s_cselect_b32 s40, 1, 0')
    e('s_cmp_ge_u32 s15, 10')
    e('s_cselect_b32 s40, 2, s40')
    e('s_mul_i32 s41, s40, 5')
    e('s_sub_u32 s41, s15, s41')
    e('s_lshl_b32 s42, s14, 7')
    e('s_lshl_b32 s43, s15, 4')
    e('s_add_u32 s42, s42, s43')
    e('s_lshl_b32 s43, s18, 1')
    e('s_add_u32 s42, s42, s43')
    e('s_mul_i32 s43, s42, 1280')
    e('v_lshlrev_b32 v5, 2, v1')
    e('s_cmp_ge_u32 s18, 8')
    e(f's_cbranch_scc0 {name}_compute')
    if 'noload' in os.environ.get('EXP',''): e(f's_branch {name}_fin')
    e('s_sub_u32 s44, s18, 8')
    TOUCH=int(os.environ.get('TOUCH','1'))
    e('v_subrev_u32 v7, 512, v0')
    e('v_mov_b32 v118, v0')
    def do_touch():
        e('v_subrev_u32 v119, 512, v118')
        e('v_lshlrev_b32 v117, 7, v119')
        e('s_mul_i32 s50, s2, 10240')
        e('s_mul_i32 s51, s2, 11264')
        e('v_mov_b32 v116, 0x7ffffff0')
        e('v_cmp_gt_u32 vcc, 80, v119')
        A.nop(2)
        e('v_cndmask_b32 v118, v116, v117, vcc')
        e('buffer_load_dword v126, v118, s[24:27], s50 offen')
        e('buffer_load_dword v126, v118, s[36:39], s50 offen')
        e('v_cmp_gt_u32 vcc, 88, v119')
        A.nop(2)
        e('v_cndmask_b32 v118, v116, v117, vcc')
        e('buffer_load_dword v127, v118, s[20:23], s51 offen')
    if TOUCH==1:
        do_touch(); log0=1
    e('v_lshrrev_b32 v6, 4, v1')
    e('v_and_b32 v7, 15, v1')
    e('s_lshr_b32 s45, s44, 2')
    e('s_lshl_b32 s45, s45, 5')
    e('s_and_b32 s46, s44, 1')
    e('s_lshl_b32 s46, s46, 4')
    e('s_add_u32 s45, s45, s46')
    e('s_bfe_u32 s46, s44, 0x10001')
    e('s_lshl_b32 s46, s46, 2')
    e('s_add_u32 s45, s45, s46')
    e('s_lshl_b32 s46, s15, 8')
    e('v_add_u32 v8, s45, v6')
    e('v_mul_u32_u24 v8, 3840, v8')
    e('v_add_u32 v8, s46, v8')
    e('v_lshlrev_b32 v9, 1, v6')
    e('v_xor_b32 v9, v9, v7')
    e('v_lshl_add_u32 v120, v9, 4, v8')
    e('v_xor_b32 v9, 8, v9')
    e('v_lshl_add_u32 v121, v9, 4, v8')
    e('v_lshrrev_b32 v6, 3, v1')
    e('v_and_b32 v7, 7, v1')
    e('s_lshl_b32 s45, s14, 7')
    e('s_lshl_b32 s46, s44, 4')
    e('s_add_u32 s45, s45, s46')
    e('v_add_u32 v8, s45, v6')
    e('v_mul_u32_u24 v8, 1280, v8')
    e('v_lshl_add_u32 v122, v7, 4, v8')
    e('v_lshrrev_b32 v9, 1, v6')
    e('v_xor_b32 v9, v9, v7')
    e('s_lshl_b32 s46, s44, 11')
    e(f's_add_u32 s46, s46, {XOFF}')
    e('v_lshlrev_b32 v8, 7, v6')
    e('v_add_u32 v8, s46, v8')
    e('v_lshl_add_u32 v123, v9, 4, v8')
    e('v_xor_b32 v9, 4, v9')
    e('v_lshl_add_u32 v124, v9, 4, v8')
    e('s_lshl_b32 s46, s44, 11')
    e('s_mov_b32 s60, 0'); e('s_mov_b32 s61, 10240')
    e('v_mov_b32 v125, v1')
    XS=lambda c,i:(c*2+i)*4
    log=[]
    def Lw(c):
        for m,sr in enumerate((24,36)):
            for i in range(2):
                e(f's_mov_b32 s47, {c*245760+i*30720}')
                e(f's_add_u32 m0, s46, {(c%4)*WSZ+m*16384+i*1024}')
                e('s_nop 0')
                if 'nodma' in os.environ.get('EXP',''): e(f'buffer_load_dword v126, v{120+i}, s[{sr}:{sr+3}], s47 offen')
                else: e(f'buffer_load_dwordx4 v{120+i}, s[{sr}:{sr+3}], s47 offen lds')
                log.append(('W',c))
    def Lx(c):
        for i in range(2):
            e(f'buffer_load_dwordx4 v[{XS(c,i)}:{XS(c,i)+3}], v122, s[20:23], s{60+i} offen offset:{c*128}'); log.append(('x',c))
    def Lsync(c):
        last=max(i for i,t in enumerate(log) if t in (('x',c),('W',c)))
        if STAMP:
            e('s_memtime s[78:79]'); e('s_waitcnt lgkmcnt(0)')
        e(f's_waitcnt vmcnt({len(log)-1-last})')
        if STAMP:
            e('s_memtime s[80:81]'); e('s_waitcnt lgkmcnt(0)')
            e('s_sub_u32 s82, s80, s78')
            if c==0: e('s_mov_b32 s74, 0')
            else: e('s_add_u32 s74, s74, s82')
        for i in range(2):
            if 'nodsw' in os.environ.get('EXP',''): continue
            e(f'ds_write_b128 v{123+i}, v[{XS(c,i)}:{XS(c,i)+3}] offset:{(c%2)*16384+i*1024}')
        e('s_waitcnt lgkmcnt(0)')
        if STAMP:
            e('s_memtime s[78:79]'); e('s_waitcnt lgkmcnt(0)')
        if 'free' not in os.environ.get('EXP',''): e('s_barrier')
        if STAMP:
            e('s_memtime s[80:81]'); e('s_waitcnt lgkmcnt(0)')
            e('s_sub_u32 s82, s80, s78')
            if c==0: e('s_mov_b32 s76, 0')
            else: e('s_add_u32 s76, s76, s82')
            e('s_mov_b32 s75, 0'); e('s_mov_b32 s77, 0')
    sched={-1:[('x',0),('W',0),('x',1),('W',1),('x',2),('W',2)],0:[('x',3),('W',3),('x',4),('x',5)],1:[('W',4),('x',6),('x',7)],2:[('W',5),('x',8),('x',9)],3:[('W',6)],4:[('W',7)],5:[('W',8)],6:[('W',9)]}
    for c in range(-1,10):
        if c>=0: Lsync(c)
        for k_,c_ in sched.get(c,[]):
            (Lw if k_=='W' else Lx)(c_)
            if TOUCH==2 and (k_,c_)==('W',1):
                do_touch()
                log.extend([('t',0)]*3)
    e('s_load_dwordx2 s[48:49], s[0:1], 16')
    e('s_load_dwordx2 s[50:51], s[0:1], 40')
    e('s_lshl_b32 s52, s2, 3')
    e('s_add_u32 s52, s52, s44')
    e('s_mul_i32 s53, s52, 5243')
    e('s_lshr_b32 s53, s53, 20')
    e('s_mul_i32 s54, s53, 200')
    e('s_sub_u32 s54, s52, s54')
    e('s_mul_i32 s55, s54, 52429')
    e('s_lshr_b32 s55, s55, 18')
    e('s_mul_i32 s56, s55, 5')
    e('s_sub_u32 s56, s54, s56')
    e('s_waitcnt lgkmcnt(0)')
    srd(A,64,48,640*1280)
    srd(A,60,50,640*1280)
    e('v_and_b32 v2, 15, v125')
    e('v_lshrrev_b32 v3, 4, v125')
    e('s_lshl_b32 s57, s55, 2')
    e('v_add_u32 v3, s57, v3')
    e('v_mul_u32_u24 v6, 205, v3')
    e('v_lshrrev_b32 v6, 10, v6')
    e('v_mul_u32_u24 v7, 5, v6')
    e('v_sub_u32 v7, v3, v7')
    e('v_mul_u32_u24 v6, 20, v6')
    e('v_and_b32 v8, 1, v7')
    e('v_lshlrev_b32 v8, 2, v8')
    e('v_cmp_eq_u32 vcc, 4, v7')
    e('v_mov_b32 v9, 16')
    A.nop(1)
    e('v_cndmask_b32 v8, v8, v9, vcc')
    e('v_add_u32 v6, v6, v8')
    e('v_mov_b32 v9, 8')
    e('v_cndmask_b32 v9, v9, 0, vcc')
    e('s_mul_i32 s57, s53, 160')
    e('s_lshl_b32 s58, s56, 5')
    e('s_add_u32 s57, s57, s58')
    e('v_lshlrev_b32 v10, 1, v2')
    e('v_add_u32 v10, s57, v10')
    e('v_mov_b32 v11, 0x7ffffff0')
    labw=A.newlabel('k1now')
    e('s_cmp_ge_u32 s52, 1600')
    e(f's_cbranch_scc1 {labw}')
    for half in range(2):
        if half==0: e('v_mov_b32 v12, v6')
        else: e('v_add_u32 v12, v6, v9')
        e('v_mul_u32_u24 v12, 1280, v12')
        e('v_add_u32 v12, v12, v10')
        e('v_cmp_gt_u32 vcc, 2, v7')
        if half==0:
            e('v_cmp_eq_u32 s[58:59], 4, v7')
            e('s_or_b64 vcc, vcc, s[58:59]')
        A.nop(2)
        e('v_cndmask_b32 v13, v11, v12, vcc')
        e('v_cndmask_b32 v14, v12, v11, vcc')
        for j in range(4):
            e(f'buffer_load_ushort v{40+half*4+j}, v13, s[60:63], 0 offen offset:{j*1280}')
            e(f'buffer_load_ushort v{48+half*4+j}, v14, s[64:67], 0 offen offset:{j*1280}')
    e('s_waitcnt vmcnt(0)')
    for j in range(8): e(f'v_or_b32 v{40+j}, v{40+j}, v{48+j}')
    for j in range(4):
        e(f'v_lshl_or_b32 v{40+j}, v{41+2*j}, 16, v{40+2*j}')
    e('v_lshlrev_b32 v5, 4, v125')
    e('s_lshl_b32 s53, s52, 10')
    e(f's_add_u32 s53, s53, {WF}')
    e(f'buffer_store_dwordx4 v[40:43], v5, s[28:31], s53 offen{STF}')
    A.label(labw)
    e('s_cmp_ge_u32 s15, 8')
    e(f's_cbranch_scc1 {name}_fin')
    e('s_lshl_b32 s42, s14, 7')
    e('s_lshl_b32 s43, s15, 4')
    e('s_add_u32 s42, s42, s43')
    e('s_lshl_b32 s43, s44, 1')
    e('s_add_u32 s42, s42, s43')
    e('s_mul_i32 s43, s42, 1280')
    e('v_lshlrev_b32 v5, 2, v125')
    for i in range(5):
        e(f'buffer_load_dword v{100+i}, v5, s[32:35], 0 offen offset:{i*256}')
    for rr in range(2):
        for i in range(5):
            e(f'buffer_load_dword v{105+rr*5+i}, v5, s[20:23], s43 offen offset:{rr*1280+i*256}')
    e('s_waitcnt vmcnt(0)')
    e('s_mov_b32 s55, 0xffff0000')
    for rr in range(2):
        d=20+rr
        first=True
        for i in range(5):
            g=100+i; x=105+rr*5+i
            e(f'v_lshlrev_b32 v30, 16, v{g}')
            e(f'v_lshlrev_b32 v31, 16, v{x}')
            if first: e(f'v_mul_f32 v{d}, v30, v31')
            else: e(f'v_fmac_f32 v{d}, v30, v31')
            first=False
            e(f'v_and_b32 v30, s55, v{g}')
            e(f'v_and_b32 v31, s55, v{x}')
            e(f'v_fmac_f32 v{d}, v30, v31')
    for sh in (8,4,2,1):
        A.nop(2)
        for rr in range(2):
            d=20+rr
            e(f'v_add_f32_dpp v{d}, v{d}, v{d} row_ror:{sh} row_mask:0xf bank_mask:0xf')
    A.nop(1)
    for rr in range(2):
        for q in range(4):
            e(f'v_readlane_b32 s{46+rr*4+q}, v{20+rr}, {q*16}')
    A.nop(2)
    for rr in range(2):
        d=20+rr
        e(f'v_mov_b32 v{d}, s{46+rr*4}')
        for q in range(1,4):
            e(f'v_add_f32 v{d}, s{46+rr*4+q}, v{d}')
    e('v_cmp_eq_u32 vcc, 1, v125')
    A.nop(2)
    e('v_cndmask_b32 v20, v20, v21, vcc')
    e(f's_mov_b32 s52, {f2u(LOG2E):#x}')
    e('v_mul_f32 v20, s52, v20')
    e('v_sub_f32 v20, 0, v20')
    e('v_exp_f32 v20, v20')
    e('s_nop 0')
    e('v_add_f32 v20, 1.0, v20')
    e('v_rcp_f32 v20, v20')
    e('v_add_u32 v22, s42, v125')
    e('v_lshlrev_b32 v22, 2, v22')
    e(f's_mov_b32 s55, {GATE}')
    e('s_mov_b64 exec, 3')
    e(f'buffer_store_dword v20, v22, s[28:31], s55 offen{STF}')
    e('s_mov_b64 exec, -1')
    e(f's_branch {name}_fin')
    A.label(f'{name}_compute')
    e('v_and_b32 v2, 15, v1')
    e('v_lshrrev_b32 v3, 4, v1')
    e('v_lshrrev_b32 v4, 1, v2')
    e('v_xor_b32 v4, v4, v3')
    e('s_lshl_b32 s44, s16, 13')
    e(f's_add_u32 s44, s44, {XOFF}')
    e('v_lshlrev_b32 v6, 7, v2')
    e('v_add_u32 v6, s44, v6')
    e('v_lshl_add_u32 v14, v4, 4, v6')
    e('v_xor_b32 v4, 4, v4')
    e('v_lshl_add_u32 v15, v4, 4, v6')
    e('v_lshrrev_b32 v4, 2, v1')
    e('v_and_b32 v6, 7, v4')
    e('v_lshlrev_b32 v7, 8, v4')
    e('v_and_b32 v8, 3, v1')
    e('v_lshl_add_u32 v7, v8, 3, v7')
    e('s_lshr_b32 s44, s17, 1')
    e('s_lshl_b32 s44, s44, 14')
    e('v_add_u32 v7, s44, v7')
    e('s_and_b32 s44, s17, 1')
    e('s_lshl_b32 s44, s44, 2')
    for tt in range(4):
        e(f's_add_u32 s45, s44, {tt}')
        e('v_xor_b32 v8, s45, v6')
        e(f'v_lshl_add_u32 v{16+tt}, v8, 5, v7')
    e('s_lshr_b32 s49, s17, 1')
    e('s_cmp_eq_u32 s40, 0')
    e(f's_cbranch_scc1 {name}_WX')
    e('s_cmp_eq_u32 s40, 1')
    e('s_cselect_b32 s50, s49, 0')
    e('s_cmp_eq_u32 s50, 1')
    e(f's_cbranch_scc1 {name}_WX')

    XF=lambda mt:20+mt*4
    WFr=lambda s_,tt:36+s_*16+tt*4
    ACC=lambda mt,tt:68-4+ (mt*4+tt)*4 + 0 if False else 64+ (mt*4+tt)*4+4
    ACC=lambda mt,tt:64+(mt*4+tt)*4
    WFr=lambda s_,tt:32+s_*16+tt*4
    XF=lambda mt:16+mt*4 if False else 112
    XF=lambda mt:(0,0,0,0)[mt]
    XF=lambda mt:16+mt*4
    def mainloop(wx):
        EXP=os.environ.get('EXP','')
        e('v_mov_b32 v8, v14'); e('v_mov_b32 v9, v15')
        for i in range(4): e(f'v_mov_b32 v{10+i}, v{16+i}')
        def xread(ks2,mt):
            e(f'ds_read_b128 v[{XF(mt)}:{XF(mt)+3}], v{8+ks2} offset:{mt*2048}')
        def wread(ks2,s_):
            for tt in range(4):
                for hf in range(2):
                    e(f'ds_read_b64_tr_b16 v[{WFr(s_,tt)+2*hf}:{WFr(s_,tt)+2*hf+1}], v{10+tt} offset:{(ks2*32+hf*16)*256}')
        def sync():
            e('s_waitcnt lgkmcnt(0)')
            e('s_barrier')
        def advance():
            for i in range(2): e(f'v_xor_b32 v{8+i}, 16384, v{8+i}')
            for i in range(4): e(f'v_add_u32 v{10+i}, {WSZ}, v{10+i}')
            for i in range(4): e(f'v_and_b32 v{10+i}, 0x1ffff, v{10+i}')
        def kstep(s_,nk,last=False):
            if not last: wread(nk,1-s_)
            for mt in range(4):
                e(f's_waitcnt lgkmcnt({11 if not last else 3-mt})')
                for tt in range(4):
                    a_=ACC(mt,tt)
                    cc=f'v[{a_}:{a_+3}]'
                    xr=f'v[{XF(mt)}:{XF(mt)+3}]'; wr=f'v[{WFr(s_,tt)}:{WFr(s_,tt)+3}]'
                    if wx: e(f'v_mfma_f32_16x16x32_bf16 v[{a_}:{a_+3}], {wr}, {xr}, {cc}')
                    else:  e(f'v_mfma_f32_16x16x32_bf16 v[{a_}:{a_+3}], {xr}, {wr}, {cc}')
                if not last: xread(nk,mt)
        for i in range(64): e(f'v_mov_b32 v{64+i}, 0')
        e('s_mov_b32 s70, 0') if not STAMP else e('s_mov_b32 s84, 0')
        cnt='s70' if not STAMP else 's84'
        sync()
        stamp_mid(A,0)
        wread(0,0)
        for mt in range(4): xread(0,mt)
        lab=A.newlabel('k1loop')
        A.label(lab)
        kstep(0,1)
        sync()
        advance()
        kstep(1,0)
        e(f's_add_u32 {cnt}, {cnt}, 1')
        e(f's_cmp_lt_u32 {cnt}, 9')
        e(f's_cbranch_scc1 {lab}')
        kstep(0,1)
        e('s_waitcnt lgkmcnt(0)')
        kstep(1,0,last=True)
        A.nop(10)
        stamp_mid(A,1)

    def consts():
        e(f's_mov_b32 s52, {f2u(LOG2E):#x}')
        e(f's_mov_b32 s53, {f2u(LOG2E):#x}')
        e(f's_mov_b32 s66, {f2u(1e-6):#x}')
        e(f's_mov_b32 s67, {f2u(1e-6):#x}')
        e(f's_mov_b32 s54, {f2u(QSCALE):#x}')
        e(f's_mov_b32 s68, {f2u(QSCALE):#x}')
        e(f's_mov_b32 s69, {f2u(QSCALE):#x}')
    def phi(regs,tmp):
        n=len(regs)
        for i in range(0,n,2):
            e(f'v_pk_mul_f32 v[{tmp+i}:{tmp+i+1}], v[{regs[i]}:{regs[i]+1}], s[52:53]')
        for i in range(n): e(f'v_exp_f32_e64 v{tmp+i}, v{tmp+i} clamp')
        for i,r in enumerate(regs): e(f'v_max_f32 v{r}, 0, v{r}')
        for i in range(0,n,2):
            e(f'v_pk_add_f32 v[{tmp+i}:{tmp+i+1}], v[{tmp+i}:{tmp+i+1}], s[66:67]')
        for i in range(0,n,2):
            e(f'v_pk_add_f32 v[{regs[i]}:{regs[i]+1}], v[{regs[i]}:{regs[i]+1}], v[{tmp+i}:{tmp+i+1}]')
    def gate_epilogue():
        lab=A.newlabel('k1ng')
        e('s_waitcnt vmcnt(0)')
        e('s_cmp_ge_u32 s15, 8')
        e(f's_cbranch_scc1 {lab}')
        e('s_mov_b32 s55, 0xffff0000')
        for rr in range(2):
            d=20+rr
            first=True
            for i in range(5):
                g=160+i; x=165+rr*5+i
                e(f'v_lshlrev_b32 v22, 16, v{g}')
                e(f'v_lshlrev_b32 v23, 16, v{x}')
                if first: e(f'v_mul_f32 v{d}, v22, v23')
                else: e(f'v_fmac_f32 v{d}, v22, v23')
                first=False
                e(f'v_and_b32 v22, s55, v{g}')
                e(f'v_and_b32 v23, s55, v{x}')
                e(f'v_fmac_f32 v{d}, v22, v23')
        for sh in (8,4,2,1):
            A.nop(2)
            for rr in range(2):
                d=20+rr
                e(f'v_add_f32_dpp v{d}, v{d}, v{d} row_ror:{sh} row_mask:0xf bank_mask:0xf')
        A.nop(1)
        for rr in range(2):
            for q in range(4):
                e(f'v_readlane_b32 s{56+rr*4+q}, v{20+rr}, {q*16}')
        A.nop(2)
        for rr in range(2):
            d=20+rr
            e(f'v_mov_b32 v{d}, s{56+rr*4}')
            for q in range(1,4):
                e(f'v_add_f32 v{d}, s{56+rr*4+q}, v{d}')
            e(f'v_mul_f32 v{d}, s52, v{d}')
            e(f'v_sub_f32 v{d}, 0, v{d}')
            e(f'v_exp_f32 v{d}, v{d}')
            e('s_nop 0')
            e(f'v_add_f32 v{d}, 1.0, v{d}')
            e(f'v_rcp_f32 v{d}, v{d}')
        e('s_nop 0')
        e('v_cmp_eq_u32 vcc, 1, v1')
        A.nop(2)
        e('v_cndmask_b32 v20, v20, v21, vcc')
        e('v_add_u32 v22, s42, v1')
        e('v_lshlrev_b32 v22, 2, v22')
        e(f's_mov_b32 s55, {GATE}')
        e('s_mov_b64 exec, 3')
        e(f'buffer_store_dword v20, v22, s[28:31], s55 offen{STF}')
        e('s_mov_b64 exec, -1')
        A.label(lab)

    def wx_epi(kind):
        base={'Aq':PA,'Bq':QB,'Bk':KB}[kind]
        allregs=[ACC(mt,tt)+r for mt in range(4) for tt in range(4) for r in range(4)]
        if kind=='Aq':
            for h in range(4): phi(allregs[16*h:16*h+16],32)
        if kind=='Bq':
            for r in allregs[::2]: e(f'v_pk_mul_f32 v[{r}:{r+1}], v[{r}:{r+1}], s[68:69]')
        e('s_lshl_b32 s56, s41, 5')
        e('s_and_b32 s57, s17, 1')
        e('s_lshl_b32 s57, s57, 4')
        e('s_add_u32 s56, s56, s57')
        e('v_add_u32 v4, s56, v3')
        e('s_lshl_b32 s57, s14, 2')
        e('s_lshl_b32 s58, s16, 1')
        e('s_add_u32 s57, s57, s58')
        if kind=='Bk':
            e('v_and_b32 v5, 8, v2')
            e('v_lshlrev_b32 v5, 1, v5')
            e('v_and_b32 v6, 7, v2')
            e('v_add_u32 v5, v5, v6')
            dodd=8
        else:
            e('v_mov_b32 v5, v2')
            dodd=16
        e(f's_mov_b32 s59, {base}')
        for tt in range(4):
            e(f'v_add_u32 v6, {4*tt}, v4')
            e('v_mul_u32_u24 v7, 205, v6')
            e('v_lshrrev_b32 v7, 10, v7')
            e('v_mul_u32_u24 v8, 5, v7')
            e('v_sub_u32 v8, v6, v8')
            e('v_lshlrev_b32 v9, 6, v7')
            e('v_add_u32 v9, s57, v9')
            e('v_mul_u32_u24 v9, 1280, v9')
            if kind=='Aq':
                e('v_and_b32 v10, 1, v8')
                e('v_lshrrev_b32 v11, 1, v8')
            else:
                e('v_lshrrev_b32 v10, 1, v8')
                e('v_and_b32 v11, 1, v8')
            e('v_lshlrev_b32 v10, 9, v10')
            e('v_lshl_add_u32 v10, v11, 3, v10')
            e('v_lshl_add_u32 v10, v5, 4, v10')
            e('v_lshlrev_b32 v11, 3, v5')
            e('v_add_u32 v11, 1024, v11')
            e('v_cmp_eq_u32 vcc, 4, v8')
            A.nop(2)
            e('v_cndmask_b32 v12, v10, v11, vcc')
            e(f'v_add_u32 v10, {dodd*16}, v10')
            e(f'v_add_u32 v11, {dodd*8}, v11')
            e('v_cndmask_b32 v13, v10, v11, vcc')
            e('v_add_u32 v12, v12, v9')
            e('v_add_u32 v13, v13, v9')
            for mt in range(4):
                a_=ACC(mt,tt)
                pk=32+(tt*4+mt)*2
                e(f'v_cvt_pk_bf16_f32 v{pk}, v{a_}, v{a_+1}')
                e(f'v_cvt_pk_bf16_f32 v{pk+1}, v{a_+2}, v{a_+3}')
                e(f'buffer_store_dwordx2 v[{pk}:{pk+1}], v{12+(mt&1)}, s[28:31], s59 offen offset:{(mt>>1)*1280}{STF}')
            if kind!='Aq':
                for mt in range(4):
                    a_=ACC(mt,tt)
                    e(f'v_mul_f32 v{14+mt}, v{a_}, v{a_}')
                    for r in range(1,4): e(f'v_fmac_f32 v{14+mt}, v{a_+r}, v{a_+r}')
                e('v_max_f32 v14, v14, v15')
                e('v_max3_f32 v14, v16, v17, v14')
                for sh in (8,4,2,1):
                    A.nop(2)
                    e(f'v_max_f32_dpp v14, v14, v14 row_ror:{sh} row_mask:0xf bank_mask:0xf')
                e('s_lshl_b32 s60, s14, 1')
                e('s_add_u32 s60, s60, s16')
                e('s_lshl_b32 s60, s60, 2')
                e(f's_add_u32 s60, s60, {NRM+(160*32*4 if kind=="Bk" else 0)}')
                e('v_lshlrev_b32 v15, 7, v6')
                e('s_mov_b32 exec_lo, 0x00010001')
                e('s_mov_b32 exec_hi, 0x00010001')
                e(f'buffer_store_dword v14, v15, s[28:31], s60 offen{STF}')
                e('s_mov_b64 exec, -1')
                A.nop(1)

    mainloop(False)
    consts()
    e('v_and_b32 v2, 15, v1')
    e('v_lshrrev_b32 v3, 4, v1')
    e(f's_mov_b32 s59, {PKT}')
    e('s_cmp_eq_u32 s40, 2')
    e(f's_cselect_b32 s59, {VAT}, s59')
    e('s_lshl_b32 s60, s40, 1')
    e('s_add_u32 s60, s60, s49')
    e('s_cmp_eq_u32 s60, 5')
    e(f's_cselect_b32 s59, {VB}, s59')
    lab=A.newlabel('k1nophi')
    e('s_cmp_eq_u32 s40, 1')
    e(f's_cbranch_scc0 {lab}')
    allregs=[ACC(mt,tt)+r for mt in range(4) for tt in range(4) for r in range(4)]
    for h in range(4): phi(allregs[16*h:16*h+16],32)
    A.label(lab)
    e('s_lshl_b32 s56, s41, 7')
    e('s_and_b32 s57, s17, 1')
    e('s_lshl_b32 s57, s57, 6')
    e('s_add_u32 s56, s56, s57')
    e('v_add_u32 v4, s56, v2')
    e('s_lshl_b32 s57, s14, 2')
    e('s_lshl_b32 s58, s16, 1')
    e('s_add_u32 s57, s57, s58')
    e('v_mul_u32_u24 v5, 320, v3')
    for tt in range(4):
        e(f'v_add_u32 v6, {16*tt}, v4')
        e('v_mul_u32_u24 v7, 3277, v6')
        e('v_lshrrev_b32 v7, 16, v7')
        e('v_mul_u32_u24 v8, 20, v7')
        e('v_sub_u32 v8, v6, v8')
        e('v_lshlrev_b32 v9, 6, v7')
        e('v_add_u32 v9, s57, v9')
        e('v_mul_u32_u24 v9, 1280, v9')
        e('v_add_u32 v9, v9, v5')
        e('v_lshl_add_u32 v9, v8, 4, v9')
        for up in range(2):
            pk=32+(tt*2+up)*4
            for a2 in range(2):
                a_=ACC(2*up+a2,tt)
                e(f'v_cvt_pk_bf16_f32 v{pk+2*a2}, v{a_}, v{a_+1}')
                e(f'v_cvt_pk_bf16_f32 v{pk+2*a2+1}, v{a_+2}, v{a_+3}')
            e(f'buffer_store_dwordx4 v[{pk}:{pk+3}], v9, s[28:31], s59 offen offset:{up*1280}{STX}')
        A.nop(1)
    e(f's_branch {name}_fin')

    A.label(f'{name}_WX')
    mainloop(True)
    consts()
    e('v_and_b32 v2, 15, v1')
    e('v_lshrrev_b32 v3, 4, v1')
    e('s_cmp_eq_u32 s40, 1')
    e(f's_cbranch_scc1 {name}_Bk')
    e('s_cmp_eq_u32 s49, 1')
    e(f's_cbranch_scc1 {name}_Bq')
    wx_epi('Aq')
    e(f's_branch {name}_fin')
    A.label(f'{name}_Bq')
    wx_epi('Bq')
    e(f's_branch {name}_fin')
    A.label(f'{name}_Bk')
    wx_epi('Bk')
    e(f's_branch {name}_fin')
    A.label(f'{name}_fin')
    stamp_end(A,0,12,18)
    A.label(f'{name}_done')
    e('s_endpgm')

def k1_desc(name='k1_kernel'):
    return f'''.amdhsa_kernel {name}
  .amdhsa_next_free_vgpr 128
  .amdhsa_next_free_sgpr 102
  .amdhsa_accum_offset 128
  .amdhsa_group_segment_fixed_size 0
  .amdhsa_kernarg_size 80
  .amdhsa_user_sgpr_count 2
  .amdhsa_user_sgpr_kernarg_segment_ptr 1
  .amdhsa_system_sgpr_workgroup_id_x 1
.end_amdhsa_kernel
'''
K1_LAUNCH='; @launch kernel=k1_kernel grid=(240,1,1) block=(1024,1,1) lds=163840'
```
